```python
import torch

def _softmax(x, axis=-1):
    return torch.softmax(x, dim=axis)
def _gelu(x):
    return torch.nn.functional.gelu(x, approximate="tanh")
def _silu(x):
    return torch.nn.functional.silu(x)
def _sigmoid(x):
    return torch.sigmoid(x)
def _layernorm(x, axis=-1, eps=1e-5):
    m = x.mean(dim=axis, keepdim=True)
    v = x.var(dim=axis, keepdim=True, unbiased=False)
    return (x - m) / torch.sqrt(v + eps)
def _scatter_add(tgt, idx, src, axis=0):
    return tgt.clone().index_add_(axis, idx, src)
def _segment_sum(src, seg, n):
    out = torch.zeros((n,) + src.shape[1:], dtype=src.dtype)
    return out.index_add_(0, seg, src)
def _pad(x, pw):
    flat = tuple(v for pair in reversed(pw) for v in pair)
    return torch.nn.functional.pad(x, flat)

kernel_name = 'standalone__gqa_softmax__sampling'

def setup_inputs():

    _w = (lambda a: (lambda t: t.to(torch.bfloat16) if t.is_floating_point() else t)(torch.as_tensor(a)))
    B, Hq, Hkv, Sq, Sk, D = 8, 32, 8, 1, 8192, 128
    return {
        "q": _w((lambda *s: torch.randn(*s, dtype=torch.bfloat16) * 0.8)(B, Hq, Sq, D)),
        "k": _w((lambda *s: torch.randn(*s, dtype=torch.bfloat16) * 0.8)(B, Hkv, Sk, D)),
        "v": _w((lambda *s: torch.randn(*s, dtype=torch.bfloat16) * 0.05)(B, Hkv, Sk, D)),
    }

def reference(q, k, v):
    B, Hq, Sq, D = q.shape
    Hkv = k.shape[1]
    rep = Hq // Hkv
    k = (lambda x, n, axis: torch.repeat_interleave(x, n, dim=axis))(k, rep, axis=1)
    v = (lambda x, n, axis: torch.repeat_interleave(x, n, dim=axis))(v, rep, axis=1)
    scale = D ** -0.5
    scores = torch.einsum("bhqd,bhkd->bhqk", q, k) * scale
    p = _softmax(scores, axis=-1)
    return torch.einsum("bhqk,bhkd->bhqd", p, v)
```

```python
import sys, math, argparse

NAME = "standalone__gqa_softmax__sampling"
HDR = """; Kernarg layout for this problem (48 bytes, ptrs only, base s[0:1]):
"""

def f2u(x):
    import struct
    return struct.unpack("<I", struct.pack("<f", x))[0]

class G:
    def __init__(self):
        self.L = []
    def __call__(self, s):
        self.L.append("    " + s)
    def lab(self, s):
        self.L.append(s + ":")
    def c(self, s):
        self.L.append("    ; " + s)
    def text(self):
        return "\n".join(self.L) + "\n"

def vr(b, n=1):
    return f"v{b}" if n == 1 else f"v[{b}:{b+n-1}]"

def gen(NW=16, NSPLIT=4, D=2, ldflags="nt", interleave=True, stamps=False):
    g = G()
    NG = 64
    NWG = NG * NSPLIT
    KEYS_WG = 8192 // NSPLIT
    TILES_WG = KEYS_WG // 16
    T = TILES_WG // NW
    assert T % D == 0 and T >= D
    CHUNK = KEYS_WG * 256
    NT = NW * 64
    CT = min(NT, 512)
    OPT = 512 // CT
    LDS_ML = NW * 2048
    LDS_FLAG = LDS_ML + 4 * NW * 8
    LDS = LDS_FLAG + 64
    cscale = (128 ** -0.5) * math.log2(math.e)

    vTid = 0
    vKoff = 1; vVoff = 2; vM = 3; vMc = 4; vL = 5; vMask0 = 6; vMask1 = 7
    vT0 = 8; vT1 = 9; vA = 10; vMcN = 11
    vQ = 12
    vO = 16
    vS = 24
    vB = 40
    vKV = 58
    vKV = (vKV + 1) & ~1
    nv = vKV + 32 * D
    def Kreg(d, i): return vKV + d * 32 + i * 4
    def Vreg(d, i): return vKV + d * 32 + 16 + i * 4
    def X(i): return vB + 2 + 4 * i

    sK = 16; sV = 20; sQ = 24; sW = 28; sOut = 32; sD = 36
    sGrp = 40; sSplit = 41; sWave = 42; sKo = 43; sVo = 44; sC = 45; sIt = 46; sTmp = 47; sTmp2 = 48
    sT0 = 50

    g.L.append(HDR.rstrip())
    g.L.append(f"; @launch grid=({NWG},1,1) block=({NT},1,1) lds={LDS}")
    g.L.append('.amdgcn_target "amdgcn-amd-amdhsa--gfx950"')
    g.L.append(".text")
    g.L.append(f".globl {NAME}_kernel")
    g.L.append(".p2align 8")
    g.L.append(f".type {NAME}_kernel,@function")
    g.lab(f"{NAME}_kernel")
    if stamps:
        g(f"s_memrealtime s[{sT0}:{sT0+1}]")
    g(f"s_cmp_ge_u32 s2, {NWG}")
    g("s_cbranch_scc1 L_done")
    g("s_load_dwordx8 s[4:11], s[0:1], 0")
    g("s_load_dwordx4 s[12:15], s[0:1], 32")
    g(f"v_lshrrev_b32 v{vT0}, 6, v0")
    g(f"v_and_b32 v{vVoff}, 63, v0                 ; lane")
    g(f"v_readfirstlane_b32 s{sWave}, v{vT0}")
    g(f"s_lshr_b32 s{sGrp}, s2, {int(math.log2(NSPLIT))}")
    g(f"s_and_b32 s{sSplit}, s2, {NSPLIT-1}")
    g(f"v_and_b32 v{vT0}, 3, v{vVoff}               ; p / h")
    g(f"v_bfe_u32 v{vT1}, v{vVoff}, 2, 2")
    g(f"v_lshrrev_b32 v{vA}, 4, v{vVoff}            ; g")
    g(f"v_lshlrev_b32 v{vKoff}, 4, v{vT0}")
    g(f"v_lshl_add_u32 v{vKoff}, v{vT1}, 8, v{vKoff}")
    g(f"v_lshl_add_u32 v{vKoff}, v{vA}, 6, v{vKoff}")
    g(f"v_lshlrev_b32 v{vMcN}, 8, v{vT0}")
    g(f"v_lshl_add_u32 v{vMcN}, v{vT1}, 4, v{vMcN}")
    g(f"v_lshl_add_u32 v{vMcN}, v{vA}, 6, v{vMcN}")
    g(f"v_lshlrev_b32 v{vVoff}, 4, v{vVoff}         ; lane*16")
    if interleave:
        g(f"s_lshl_b32 s{sKo}, s{sWave}, 12")
        stride = NW * 4096
    else:
        g(f"s_mul_i32 s{sKo}, s{sWave}, {T*4096}")
        stride = 4096
    g(f"s_mov_b32 s{sVo}, s{sKo}")
    g(f"s_mul_i32 s{sTmp}, s2, {CHUNK}")
    g(f"s_lshl_b32 s{sTmp2}, s{sGrp}, 10")
    g(f"s_mov_b32 s{sK+3}, 0x20000")
    g(f"s_mov_b32 s{sV+3}, 0x20000")
    g(f"s_mov_b32 s{sQ+3}, 0x20000")
    if interleave:
        g(f"s_mov_b32 s{sK+2}, {CHUNK}")
    else:
        g(f"s_add_u32 s{sK+2}, s{sKo}, {T*4096}")
    g(f"s_mov_b32 s{sV+2}, s{sK+2}")
    g(f"s_mov_b32 s{sQ+2}, 1024")
    g("s_waitcnt lgkmcnt(0)")
    g(f"s_add_u32 s{sQ}, s4, s{sTmp2}")
    g(f"s_addc_u32 s{sQ+1}, s5, 0")
    g(f"s_add_u32 s{sK}, s6, s{sTmp}")
    g(f"s_addc_u32 s{sK+1}, s7, 0")
    g(f"s_add_u32 s{sV}, s8, s{sTmp}")
    g(f"s_addc_u32 s{sV+1}, s9, 0")
    g(f"buffer_load_dwordx4 {vr(vQ,4)}, v{vMcN}, s[{sQ}:{sQ+3}], 0 offen")
    def loadK(d):
        for i in range(4):
            g(f"buffer_load_dwordx4 {vr(Kreg(d,i),4)}, v{vKoff}, s[{sK}:{sK+3}], s{sKo} offen offset:{i*1024} {ldflags}")
        g(f"s_add_u32 s{sKo}, s{sKo}, {stride}")
    def loadV(d):
        for i in range(4):
            g(f"buffer_load_dwordx4 {vr(Vreg(d,i),4)}, v{vVoff}, s[{sV}:{sV+3}], s{sVo} offen offset:{i*1024} {ldflags}")
        g(f"s_add_u32 s{sVo}, s{sVo}, {stride}")
    for d in range(D):
        loadK(d); loadV(d)
    g(f"s_mov_b32 s{sC}, {f2u(cscale):#x}")
    g(f"v_mov_b32 v{vM}, 0xff800000")
    g(f"v_mov_b32 v{vMc}, 0xff800000")
    g(f"v_mov_b32 v{vL}, 0")
    for r in range(8):
        g(f"v_mov_b32 v{vO+r}, 0")
    for r in range(18):
        g(f"v_mov_b32 v{vB+r}, 0")
    g(f"v_and_b32 v{vT0}, 1, v{vT1}")
    g(f"v_lshlrev_b32 v{vT0}, 4, v{vT0}")
    g(f"v_mov_b32 v{vA}, 0xffff")
    g(f"v_lshlrev_b32 v{vA}, v{vT0}, v{vA}")
    g(f"v_cmp_gt_u32 vcc, 2, v{vT1}")
    g("s_nop 1")
    g(f"v_cndmask_b32 v{vMask0}, 0, v{vA}, vcc")
    g(f"v_cndmask_b32 v{vMask1}, v{vA}, 0, vcc")
    g(f"s_mov_b32 s{sW}, s14")
    g(f"s_mov_b32 s{sW+1}, s15")
    g(f"s_mov_b32 s{sW+2}, {NWG*4096 + (NWG*NW*64 if stamps else 0)}")
    g(f"s_mov_b32 s{sW+3}, 0x20000")
    g(f"s_add_u32 s{sOut}, s10, s{sTmp2}")
    g(f"s_addc_u32 s{sOut+1}, s11, 0")
    g(f"s_mov_b32 s{sOut+2}, 1024")
    g(f"s_mov_b32 s{sOut+3}, 0x20000")
    g(f"s_mov_b32 s{sD}, s12")
    g(f"s_mov_b32 s{sD+1}, s13")
    g(f"s_mov_b32 s{sD+2}, 256")
    g(f"s_mov_b32 s{sD+3}, 0x20000")
    g(f"s_mov_b32 s{sIt}, {T//D}")
    if stamps:
        g(f"s_waitcnt vmcnt({8*D-4})")
        g(f"s_memrealtime s[{sT0+2}:{sT0+3}]")
    g.lab("L_loop")
    for d in range(D):
        S = lambda i, r: vS + 4 * i + r
        g(f"s_waitcnt vmcnt({8*D-4})")
        for i in range(4):
            g(f"v_mfma_f32_16x16x32_bf16 {vr(S(i,0),4)}, {vr(Kreg(d,i),4)}, {vr(vQ,4)}, 0")
        loadK(d)
        g("s_nop 2")
        for i in range(4):
            g(f"v_add_f32_dpp v{S(i,1)}, v{S(i,2)}, v{S(i,0)} row_ror:8 row_mask:0xf bank_mask:0x1")
        for i in range(4):
            g(f"v_add_f32_dpp v{S(i,1)}, v{S(i,0)}, v{S(i,2)} row_ror:8 row_mask:0xf bank_mask:0x4")
        for i in range(4):
            g(f"v_add_f32_dpp v{S(i,1)}, v{S(i,1)}, v{S(i,3)} row_ror:8 row_mask:0xf bank_mask:0x8")
        for i in range(4):
            g(f"v_add_f32_dpp v{S(i,1)}, v{S(i,3)}, v{S(i,1)} row_ror:8 row_mask:0xf bank_mask:0x2")
        for i in range(4):
            g(f"v_add_f32_dpp v{S(i,0)}, v{S(i,1)}, v{S(i,1)} row_ror:4 row_mask:0xf bank_mask:0xf")
        g(f"v_max3_f32 v{vT0}, v{S(0,0)}, v{S(1,0)}, v{S(2,0)}")
        g(f"v_max3_f32 v{vT0}, v{vT0}, v{S(3,0)}, v{vM}")
        g(f"v_mov_b32 v{vT1}, v{vT0}")
        g("s_nop 1")
        g(f"v_permlane32_swap_b32 v{vT0}, v{vT1}")
        g("s_nop 1")
        g(f"v_max_f32 v{vT0}, v{vT0}, v{vT1}")
        g(f"v_mov_b32 v{vT1}, v{vT0}")
        g("s_nop 1")
        g(f"v_permlane16_swap_b32 v{vT0}, v{vT1}")
        g("s_nop 1")
        g(f"v_max_f32 v{vM}, v{vT0}, v{vT1}")
        g(f"v_mul_f32 v{vMcN}, s{sC}, v{vM}")
        g(f"v_sub_f32 v{vA}, v{vMc}, v{vMcN}")
        g(f"v_exp_f32 v{vA}, v{vA}")
        for i in range(4):
            g(f"v_fma_f32 v{S(i,0)}, v{S(i,0)}, s{sC}, -v{vMcN}")
        for i in range(4):
            g(f"v_exp_f32 v{S(i,0)}, v{S(i,0)}")
        g(f"v_mov_b32 v{vMc}, v{vMcN}")
        for r in range(8):
            g(f"v_mul_f32 v{vO+r}, v{vO+r}, v{vA}")
        g(f"v_fma_f32 v{vL}, v{vL}, v{vA}, v{S(0,0)}")
        for i in range(4):
            g(f"v_cvt_pk_bf16_f32 v{S(i,1)}, v{S(i,0)}, v{S(i,0)}")
        g(f"v_add_f32 v{vL}, v{vL}, v{S(1,0)}")
        for i in range(4):
            g(f"v_and_b32 v{X(i)}, v{S(i,1)}, v{vMask0}")
            g(f"v_and_b32 v{X(i)+1}, v{S(i,1)}, v{vMask1}")
        g(f"v_add_f32 v{vL}, v{vL}, v{S(2,0)}")
        g(f"v_add_f32 v{vL}, v{vL}, v{S(3,0)}")
        g(f"s_waitcnt vmcnt({8*D-4})")
        for i in range(4):
            g(f"v_mfma_f32_16x16x32_bf16 {vr(vO,4)}, {vr(Vreg(d,i),4)}, {vr(X(i),4)}, {vr(vO,4)}")
            g(f"v_mfma_f32_16x16x32_bf16 {vr(vO+4,4)}, {vr(Vreg(d,i),4)}, {vr(X(i)-2,4)}, {vr(vO+4,4)}")
        loadV(d)
    g(f"s_sub_u32 s{sIt}, s{sIt}, 1")
    g(f"s_cmp_lg_u32 s{sIt}, 0")
    g("s_cbranch_scc1 L_loop")
    if stamps:
        g(f"s_memrealtime s[{sT0+4}:{sT0+5}]")
    g(f"v_mov_b32 v{vT1}, v{vL}")
    g("s_nop 1")
    g(f"v_permlane32_swap_b32 v{vL}, v{vT1}")
    g("s_nop 1")
    g(f"v_add_f32 v{vL}, v{vL}, v{vT1}")
    g(f"v_mov_b32 v{vT1}, v{vL}")
    g("s_nop 1")
    g(f"v_permlane16_swap_b32 v{vL}, v{vT1}")
    g("s_nop 1")
    g(f"v_add_f32 v{vL}, v{vL}, v{vT1}")
    assert vL == vMc + 1 and vMc % 2 == 0
    g(f"s_lshl_b32 s{sTmp}, s{sWave}, 11")
    g(f"v_add_u32 v{vT0}, s{sTmp}, v{vVoff}")
    g(f"s_lshl_b32 s{sTmp}, s{sWave}, 3")
    g(f"v_and_b32 v{vT1}, 63, v0")
    g(f"v_mul_u32_u24 v{vT1}, {NW*8}, v{vT1}")
    g(f"v_add_u32 v{vT1}, s{sTmp}, v{vT1}")
    g(f"ds_write_b128 v{vT0}, {vr(vO,4)}")
    g(f"ds_write_b128 v{vT0}, {vr(vO+4,4)} offset:1024")
    g("s_mov_b64 exec, 0xf")
    g(f"ds_write_b64 v{vT1}, {vr(vMc,2)} offset:{LDS_ML}")
    g("s_mov_b64 exec, -1")
    g("s_waitcnt vmcnt(0) lgkmcnt(0)")
    g("s_barrier")
    if NT > CT:
        g(f"s_cmp_ge_u32 s{sWave}, {CT//64}")
        g("s_cbranch_scc1 L_skipcomb")
    vH = vT0; vAddr = vT1
    vML = vKV
    vOw = vKV + 2 * NW
    assert vOw + NW * OPT <= nv, (vOw + NW*OPT, nv)
    g(f"v_bfe_u32 v{vH}, v0, 2, 2")
    g(f"v_mul_u32_u24 v{vA}, {NW*8}, v{vH}")
    g(f"v_lshlrev_b32 v{vAddr}, 2, v0")
    for w2 in range(NW // 2):
        g(f"ds_read_b128 {vr(vML+4*w2,4)}, v{vA} offset:{LDS_ML+16*w2}")
    for w in range(NW):
        for k in range(OPT):
            g(f"ds_read_b32 v{vOw+w*OPT+k}, v{vAddr} offset:{w*2048+k*CT*4}")
    g("s_waitcnt lgkmcnt(0)")
    g(f"v_max_f32 v{vMc}, v{vML}, v{vML+2}")
    for w in range(2, NW, 2):
        g(f"v_max3_f32 v{vMc}, v{vMc}, v{vML+2*w}, v{vML+2*w+2}")
    for w in range(NW):
        g(f"v_sub_f32 v{vML+2*w}, v{vML+2*w}, v{vMc}")
    for w in range(NW):
        g(f"v_exp_f32 v{vML+2*w}, v{vML+2*w}")
    g("s_nop 0")
    g(f"v_mul_f32 v{vL}, v{vML}, v{vML+1}")
    for k in range(OPT):
        g(f"v_mul_f32 v{vO+k}, v{vML}, v{vOw+k}")
    for w in range(1, NW):
        g(f"v_fmac_f32 v{vL}, v{vML+2*w}, v{vML+2*w+1}")
        for k in range(OPT):
            g(f"v_fmac_f32 v{vO+k}, v{vML+2*w}, v{vOw+w*OPT+k}")
    g(f"s_lshl_b32 s{sTmp}, s2, 12")
    for k in range(OPT):
        g(f"buffer_store_dword v{vO+k}, v{vAddr}, s[{sW}:{sW+3}], s{sTmp} offen offset:{k*CT*4} sc1")
    g(f"v_lshlrev_b32 v{vA}, 3, v{vH}")
    g(f"s_cmp_lg_u32 s{sWave}, 0")
    g("s_cbranch_scc1 L_noml")
    g("s_mov_b64 exec, 0x1111")
    g(f"buffer_store_dwordx2 {vr(vMc,2)}, v{vA}, s[{sW}:{sW+3}], s{sTmp} offen offset:2048 sc1")
    g("s_mov_b64 exec, -1")
    g.lab("L_noml")
    g("s_waitcnt vmcnt(0)")
    if NT > CT:
        g.lab("L_skipcomb")
    g("s_barrier")
    g(f"s_cmp_lg_u32 s{sWave}, 0")
    g("s_cbranch_scc1 L_noatom")
    g("s_mov_b64 exec, 1")
    g(f"v_mov_b32 v{vS}, 1")
    g(f"v_mov_b32 v{vS+1}, 0")
    g(f"s_lshl_b32 s{sTmp2}, s{sGrp}, 2")
    g(f"buffer_atomic_add v{vS}, v{vS+1}, s[{sD}:{sD+3}], s{sTmp2} offen sc0")
    g(f"v_mov_b32 v{vS+2}, {LDS_FLAG}")
    g("s_waitcnt vmcnt(0)")
    g(f"ds_write_b32 v{vS+2}, v{vS}")
    g("s_mov_b64 exec, -1")
    g("s_waitcnt lgkmcnt(0)")
    g.lab("L_noatom")
    g("s_barrier")
    if NT > CT:
        g(f"s_cmp_ge_u32 s{sWave}, {CT//64}")
        g("s_cbranch_scc1 L_fin")
    g(f"v_mov_b32 v{vS+2}, {LDS_FLAG}")
    g(f"ds_read_b32 v{vS}, v{vS+2}")
    g("s_waitcnt lgkmcnt(0)")
    g(f"v_readfirstlane_b32 s{sTmp}, v{vS}")
    g(f"s_cmp_lg_u32 s{sTmp}, {NSPLIT-1}")
    g("s_cbranch_scc1 L_fin")
    g(f"s_lshl_b32 s{sTmp}, s{sGrp}, {12+int(math.log2(NSPLIT))}")
    vP = vKV
    vPo = vKV + 2 * NSPLIT
    assert vPo + NSPLIT * OPT <= nv
    for s in range(NSPLIT):
        g(f"buffer_load_dwordx2 {vr(vP+2*s,2)}, v{vA}, s[{sW}:{sW+3}], s{sTmp} offen offset:2048 sc1")
        for k in range(OPT):
            g(f"buffer_load_dword v{vPo+s*OPT+k}, v{vAddr}, s[{sW}:{sW+3}], s{sTmp} offen offset:{k*CT*4} sc1")
        if s != NSPLIT - 1:
            g(f"s_add_u32 s{sTmp}, s{sTmp}, 4096")
    g(f"v_lshlrev_b32 v{vS}, 8, v{vH}")
    g(f"v_bfe_u32 v{vS+1}, v0, 6, 2               ; g'")
    g(f"v_lshl_add_u32 v{vS}, v{vS+1}, 6, v{vS}")
    g(f"v_and_b32 v{vS+1}, 3, v0                  ; r")
    g(f"v_lshl_add_u32 v{vS}, v{vS+1}, 4, v{vS}")
    g(f"v_bfe_u32 v{vS+1}, v0, 4, 2               ; sel")
    g(f"v_lshl_add_u32 v{vS}, v{vS+1}, 1, v{vS}")
    if CT == 512:
        g(f"v_bfe_u32 v{vS+1}, v0, 8, 1               ; half")
        g(f"v_lshl_add_u32 v{vS}, v{vS+1}, 3, v{vS}")
    else:
        assert CT == 256
    g("s_waitcnt vmcnt(0)")
    g(f"v_max_f32 v{vMc}, v{vP}, v{vP+2}")
    for s in range(2, NSPLIT):
        g(f"v_max_f32 v{vMc}, v{vMc}, v{vP+2*s}")
    for s in range(NSPLIT):
        g(f"v_sub_f32 v{vP+2*s}, v{vP+2*s}, v{vMc}")
    for s in range(NSPLIT):
        g(f"v_exp_f32 v{vP+2*s}, v{vP+2*s}")
    g("s_nop 0")
    g(f"v_mul_f32 v{vL}, v{vP}, v{vP+1}")
    for k in range(OPT):
        g(f"v_mul_f32 v{vO+k}, v{vP}, v{vPo+k}")
    for s in range(1, NSPLIT):
        g(f"v_fmac_f32 v{vL}, v{vP+2*s}, v{vP+2*s+1}")
        for k in range(OPT):
            g(f"v_fmac_f32 v{vO+k}, v{vP+2*s}, v{vPo+s*OPT+k}")
    g(f"v_rcp_f32 v{vL}, v{vL}")
    g("s_nop 0")
    for k in range(OPT):
        g(f"v_mul_f32 v{vO+k}, v{vO+k}, v{vL}")
    for k in range(OPT):
        g(f"v_cvt_pk_bf16_f32 v{vO+k}, v{vO+k}, v{vO+k}")
    for k in range(OPT):
        g(f"buffer_store_short v{vO+k}, v{vS}, s[{sOut}:{sOut+3}], 0 offen offset:{k*8}")
    g.lab("L_fin")
    if stamps:
        g(f"s_memrealtime s[{sT0+6}:{sT0+7}]")
        g(f"s_getreg_b32 s{sT0+8}, hwreg(HW_REG_XCC_ID)")
        g(f"s_getreg_b32 s{sT0+9}, hwreg(HW_REG_HW_ID)")
        g("s_waitcnt lgkmcnt(0)")
        g(f"s_mul_i32 s{sTmp}, s2, {NW}")
        g(f"s_add_u32 s{sTmp}, s{sTmp}, s{sWave}")
        g(f"s_lshl_b32 s{sTmp}, s{sTmp}, 6")
        g(f"s_add_u32 s{sTmp}, s{sTmp}, {NWG*4096}")
        g("s_mov_b64 exec, 1")
        for j in range(10):
            g(f"v_mov_b32 v{vS+j}, s{sT0+j}")
        g(f"v_mov_b32 v{vS+12}, 0")
        g(f"buffer_store_dwordx4 {vr(vS,4)}, v{vS+12}, s[{sW}:{sW+3}], s{sTmp} offen")
        g(f"buffer_store_dwordx4 {vr(vS+4,4)}, v{vS+12}, s[{sW}:{sW+3}], s{sTmp} offen offset:16")
        g(f"buffer_store_dwordx2 {vr(vS+8,2)}, v{vS+12}, s[{sW}:{sW+3}], s{sTmp} offen offset:32")
    g.lab("L_done")
    g("s_endpgm")
    nvr = max(nv, 8)
    g.L.append('.section .rodata,"a"')
    g.L.append(".p2align 6")
    g.L.append(f".amdhsa_kernel {NAME}_kernel")
    g.L.append(f"  .amdhsa_next_free_vgpr {nvr}")
    g.L.append(f"  .amdhsa_next_free_sgpr 64")
    g.L.append(f"  .amdhsa_accum_offset {(nvr+3)//4*4}")
    g.L.append("  .amdhsa_group_segment_fixed_size 0")
    g.L.append("  .amdhsa_kernarg_size 48")
    g.L.append("  .amdhsa_user_sgpr_count 2")
    g.L.append("  .amdhsa_user_sgpr_kernarg_segment_ptr 1")
    g.L.append("  .amdhsa_system_sgpr_workgroup_id_x 1")
    g.L.append(".end_amdhsa_kernel")
    return g.text()

if __name__ == "__main__":
    ap = argparse.ArgumentParser()
    ap.add_argument("-o", default="cdna_kernels/" + NAME + ".s")
    ap.add_argument("--nw", type=int, default=16)
    ap.add_argument("--nsplit", type=int, default=4)
    ap.add_argument("--d", type=int, default=2)
    ap.add_argument("--ld", default="nt")
    ap.add_argument("--contig", action="store_true")
    ap.add_argument("--stamps", action="store_true")
    a = ap.parse_args()
    open(a.o, "w").write(gen(a.nw, a.nsplit, a.d, a.ld.replace("_", " ").replace("none", ""), not a.contig, a.stamps))
```

```python
import sys, math, argparse

NAME = "standalone__gqa_softmax__sampling"
HDR = """; Kernarg layout for this problem (48 bytes, ptrs only, base s[0:1]):
"""

def f2u(x):
    import struct
    return struct.unpack("<I", struct.pack("<f", x))[0]

class G:
    def __init__(self):
        self.L = []
    def __call__(self, s):
        self.L.append("    " + s)
    def lab(self, s):
        self.L.append(s + ":")
    def c(self, s):
        self.L.append("    ; " + s)
    def text(self):
        return "\n".join(self.L) + "\n"

def vr(b, n=1):
    return f"v{b}" if n == 1 else f"v[{b}:{b+n-1}]"

def gen(NW=16, NSPLIT=4, D=2, ldflags="nt", interleave=True, stamps=False, swz=None):
    g = G()
    NG = 64
    NWG = NG * NSPLIT
    KEYS_WG = 8192 // NSPLIT
    TILES_WG = KEYS_WG // 16
    T = TILES_WG // NW
    assert T % D == 0 and T >= D
    CHUNK = KEYS_WG * 256
    NT = NW * 64
    CT = min(NT, 512)
    OPT = 512 // CT
    LDS_ML = NW * 2048
    LDS_FLAG = LDS_ML + 4 * NW * 8
    LDS = LDS_FLAG + 64
    cscale = (128 ** -0.5) * math.log2(math.e)

    vTid = 0
    vKoff = 1; vVoff = 2; vM = 3; vMc = 4; vL = 5; vMask0 = 6; vMask1 = 7
    vT0 = 8; vT1 = 9; vA = 10; vMcN = 11
    vQ = 12
    vO = 16
    vS = 24
    vB = 40
    vKV = 58
    vKV = (vKV + 1) & ~1
    nv = max(vKV + 32 * D, vKV + 2*NW + NW*OPT, vKV + 2*NSPLIT + NSPLIT*OPT)
    def Kreg(d, i): return vKV + d * 32 + i * 4
    def Vreg(d, i): return vKV + d * 32 + 16 + i * 4
    def X(i): return vB + 2 + 4 * i

    sK = 16; sV = 20; sQ = 24; sW = 28; sOut = 32; sD = 36
    sGrp = 40; sSplit = 41; sWave = 42; sKo = 43; sVo = 44; sC = 45; sIt = 46; sTmp = 47; sTmp2 = 48
    sSwK = 60; sSwV = 61; sKe = 62; sVe = 63
    sT0 = 50

    g.L.append(HDR.rstrip())
    g.L.append(f"; @launch grid=({NWG},1,1) block=({NT},1,1) lds={LDS}")
    g.L.append('.amdgcn_target "amdgcn-amd-amdhsa--gfx950"')
    g.L.append(".text")
    g.L.append(f".globl {NAME}_kernel")
    g.L.append(".p2align 8")
    g.L.append(f".type {NAME}_kernel,@function")
    g.lab(f"{NAME}_kernel")
    if stamps:
        g(f"s_memrealtime s[{sT0}:{sT0+1}]")
    g(f"s_cmp_ge_u32 s2, {NWG}")
    g("s_cbranch_scc1 L_done")
    g("s_load_dwordx8 s[4:11], s[0:1], 0")
    g("s_load_dwordx4 s[12:15], s[0:1], 32")
    g(f"v_lshrrev_b32 v{vT0}, 6, v0")
    g(f"v_and_b32 v{vVoff}, 63, v0                 ; lane")
    g(f"v_readfirstlane_b32 s{sWave}, v{vT0}")
    g(f"s_lshr_b32 s{sGrp}, s2, {int(math.log2(NSPLIT))}")
    g(f"s_and_b32 s{sSplit}, s2, {NSPLIT-1}")
    g(f"v_and_b32 v{vT0}, 3, v{vVoff}               ; p / h")
    g(f"v_bfe_u32 v{vT1}, v{vVoff}, 2, 2")
    g(f"v_lshrrev_b32 v{vA}, 4, v{vVoff}            ; g")
    g(f"v_lshlrev_b32 v{vKoff}, 4, v{vT0}")
    g(f"v_lshl_add_u32 v{vKoff}, v{vT1}, 8, v{vKoff}")
    g(f"v_lshl_add_u32 v{vKoff}, v{vA}, 6, v{vKoff}")
    g(f"v_lshlrev_b32 v{vMcN}, 8, v{vT0}")
    g(f"v_lshl_add_u32 v{vMcN}, v{vT1}, 4, v{vMcN}")
    g(f"v_lshl_add_u32 v{vMcN}, v{vA}, 6, v{vMcN}")
    g(f"v_lshlrev_b32 v{vVoff}, 4, v{vVoff}         ; lane*16")
    if interleave:
        g(f"s_lshl_b32 s{sKo}, s{sWave}, 12")
        stride = NW * 4096
    else:
        g(f"s_mul_i32 s{sKo}, s{sWave}, {T*4096}")
        stride = 4096
    g(f"s_mov_b32 s{sVo}, s{sKo}")
    g(f"s_mul_i32 s{sTmp}, s2, {CHUNK}")
    g(f"s_lshl_b32 s{sTmp2}, s{sGrp}, 10")
    g(f"s_mov_b32 s{sK+3}, 0x20000")
    g(f"s_mov_b32 s{sV+3}, 0x20000")
    g(f"s_mov_b32 s{sQ+3}, 0x20000")
    if interleave:
        g(f"s_mov_b32 s{sK+2}, {CHUNK}")
    else:
        g(f"s_add_u32 s{sK+2}, s{sKo}, {T*4096}")
    g(f"s_mov_b32 s{sV+2}, s{sK+2}")
    g(f"s_mov_b32 s{sQ+2}, 1024")
    if swz:
        assert interleave
        mul, shr = swz
        g(f"s_mul_i32 s{sSwK}, s2, {mul}")
        g(f"s_lshr_b32 s{sSwK}, s{sSwK}, {shr}")
        g(f"s_and_b32 s{sSwK}, s{sSwK}, {TILES_WG-1}")
        g(f"s_lshl_b32 s{sSwK}, s{sSwK}, 12")
    g("s_waitcnt lgkmcnt(0)")
    g(f"s_add_u32 s{sQ}, s4, s{sTmp2}")
    g(f"s_addc_u32 s{sQ+1}, s5, 0")
    g(f"s_add_u32 s{sK}, s6, s{sTmp}")
    g(f"s_addc_u32 s{sK+1}, s7, 0")
    g(f"s_add_u32 s{sV}, s8, s{sTmp}")
    g(f"s_addc_u32 s{sV+1}, s9, 0")
    g(f"buffer_load_dwordx4 {vr(vQ,4)}, v{vMcN}, s[{sQ}:{sQ+3}], 0 offen")
    def loadK(d):
        so = sKo
        if swz:
            g(f"s_xor_b32 s{sKe}, s{sKo}, s{sSwK}"); so = sKe
        for i in range(4):
            g(f"buffer_load_dwordx4 {vr(Kreg(d,i),4)}, v{vKoff}, s[{sK}:{sK+3}], s{so} offen offset:{i*1024} {ldflags}")
        g(f"s_add_u32 s{sKo}, s{sKo}, {stride}")
    def loadV(d):
        so = sVo
        if swz:
            g(f"s_xor_b32 s{sVe}, s{sVo}, s{sSwK}"); so = sVe
        for i in range(4):
            g(f"buffer_load_dwordx4 {vr(Vreg(d,i),4)}, v{vVoff}, s[{sV}:{sV+3}], s{so} offen offset:{i*1024} {ldflags}")
        g(f"s_add_u32 s{sVo}, s{sVo}, {stride}")
    for d in range(D):
        loadK(d); loadV(d)
    g(f"s_mov_b32 s{sC}, {f2u(cscale):#x}")
    g(f"v_mov_b32 v{vM}, 0xff800000")
    g(f"v_mov_b32 v{vMc}, 0xff800000")
    g(f"v_mov_b32 v{vL}, 0")
    for r in range(8):
        g(f"v_mov_b32 v{vO+r}, 0")
    for r in range(18):
        g(f"v_mov_b32 v{vB+r}, 0")
    g(f"v_and_b32 v{vT0}, 1, v{vT1}")
    g(f"v_lshlrev_b32 v{vT0}, 4, v{vT0}")
    g(f"v_mov_b32 v{vA}, 0xffff")
    g(f"v_lshlrev_b32 v{vA}, v{vT0}, v{vA}")
    g(f"v_cmp_gt_u32 vcc, 2, v{vT1}")
    g("s_nop 1")
    g(f"v_cndmask_b32 v{vMask0}, 0, v{vA}, vcc")
    g(f"v_cndmask_b32 v{vMask1}, v{vA}, 0, vcc")
    g(f"s_mov_b32 s{sW}, s14")
    g(f"s_mov_b32 s{sW+1}, s15")
    g(f"s_mov_b32 s{sW+2}, {NWG*4096 + (NWG*NW*64 if stamps else 0)}")
    g(f"s_mov_b32 s{sW+3}, 0x20000")
    g(f"s_add_u32 s{sOut}, s10, s{sTmp2}")
    g(f"s_addc_u32 s{sOut+1}, s11, 0")
    g(f"s_mov_b32 s{sOut+2}, 1024")
    g(f"s_mov_b32 s{sOut+3}, 0x20000")
    g(f"s_mov_b32 s{sD}, s12")
    g(f"s_mov_b32 s{sD+1}, s13")
    g(f"s_mov_b32 s{sD+2}, 256")
    g(f"s_mov_b32 s{sD+3}, 0x20000")
    g(f"s_mov_b32 s{sIt}, {T//D}")
    if stamps:
        g(f"s_waitcnt vmcnt({8*D-4})")
        g(f"s_memrealtime s[{sT0+2}:{sT0+3}]")
    g.lab("L_loop")
    for d in range(D):
        S = lambda i, r: vS + 4 * i + r
        g(f"s_waitcnt vmcnt({8*D-4})")
        for i in range(4):
            g(f"v_mfma_f32_16x16x32_bf16 {vr(S(i,0),4)}, {vr(Kreg(d,i),4)}, {vr(vQ,4)}, 0")
        loadK(d)
        g("s_nop 2")
        for i in range(4):
            g(f"v_add_f32_dpp v{S(i,1)}, v{S(i,2)}, v{S(i,0)} row_ror:8 row_mask:0xf bank_mask:0x1")
        for i in range(4):
            g(f"v_add_f32_dpp v{S(i,1)}, v{S(i,0)}, v{S(i,2)} row_ror:8 row_mask:0xf bank_mask:0x4")
        for i in range(4):
            g(f"v_add_f32_dpp v{S(i,1)}, v{S(i,1)}, v{S(i,3)} row_ror:8 row_mask:0xf bank_mask:0x8")
        for i in range(4):
            g(f"v_add_f32_dpp v{S(i,1)}, v{S(i,3)}, v{S(i,1)} row_ror:8 row_mask:0xf bank_mask:0x2")
        for i in range(4):
            g(f"v_add_f32_dpp v{S(i,0)}, v{S(i,1)}, v{S(i,1)} row_ror:4 row_mask:0xf bank_mask:0xf")
        g(f"v_max3_f32 v{vT0}, v{S(0,0)}, v{S(1,0)}, v{S(2,0)}")
        g(f"v_max3_f32 v{vT0}, v{vT0}, v{S(3,0)}, v{vM}")
        g(f"v_mov_b32 v{vT1}, v{vT0}")
        g("s_nop 1")
        g(f"v_permlane32_swap_b32 v{vT0}, v{vT1}")
        g("s_nop 1")
        g(f"v_max_f32 v{vT0}, v{vT0}, v{vT1}")
        g(f"v_mov_b32 v{vT1}, v{vT0}")
        g("s_nop 1")
        g(f"v_permlane16_swap_b32 v{vT0}, v{vT1}")
        g("s_nop 1")
        g(f"v_max_f32 v{vM}, v{vT0}, v{vT1}")
        g(f"v_mul_f32 v{vMcN}, s{sC}, v{vM}")
        g(f"v_sub_f32 v{vA}, v{vMc}, v{vMcN}")
        g(f"v_exp_f32 v{vA}, v{vA}")
        for i in range(4):
            g(f"v_fma_f32 v{S(i,0)}, v{S(i,0)}, s{sC}, -v{vMcN}")
        for i in range(4):
            g(f"v_exp_f32 v{S(i,0)}, v{S(i,0)}")
        g(f"v_mov_b32 v{vMc}, v{vMcN}")
        for r in range(8):
            g(f"v_mul_f32 v{vO+r}, v{vO+r}, v{vA}")
        g(f"v_fma_f32 v{vL}, v{vL}, v{vA}, v{S(0,0)}")
        for i in range(4):
            g(f"v_cvt_pk_bf16_f32 v{S(i,1)}, v{S(i,0)}, v{S(i,0)}")
        g(f"v_add_f32 v{vL}, v{vL}, v{S(1,0)}")
        for i in range(4):
            g(f"v_and_b32 v{X(i)}, v{S(i,1)}, v{vMask0}")
            g(f"v_and_b32 v{X(i)+1}, v{S(i,1)}, v{vMask1}")
        g(f"v_add_f32 v{vL}, v{vL}, v{S(2,0)}")
        g(f"v_add_f32 v{vL}, v{vL}, v{S(3,0)}")
        g(f"s_waitcnt vmcnt({8*D-4})")
        for i in range(4):
            g(f"v_mfma_f32_16x16x32_bf16 {vr(vO,4)}, {vr(Vreg(d,i),4)}, {vr(X(i),4)}, {vr(vO,4)}")
            g(f"v_mfma_f32_16x16x32_bf16 {vr(vO+4,4)}, {vr(Vreg(d,i),4)}, {vr(X(i)-2,4)}, {vr(vO+4,4)}")
        loadV(d)
    g(f"s_sub_u32 s{sIt}, s{sIt}, 1")
    g(f"s_cmp_lg_u32 s{sIt}, 0")
    g("s_cbranch_scc1 L_loop")
    if stamps:
        g(f"s_memrealtime s[{sT0+4}:{sT0+5}]")
    g(f"v_mov_b32 v{vT1}, v{vL}")
    g("s_nop 1")
    g(f"v_permlane32_swap_b32 v{vL}, v{vT1}")
    g("s_nop 1")
    g(f"v_add_f32 v{vL}, v{vL}, v{vT1}")
    g(f"v_mov_b32 v{vT1}, v{vL}")
    g("s_nop 1")
    g(f"v_permlane16_swap_b32 v{vL}, v{vT1}")
    g("s_nop 1")
    g(f"v_add_f32 v{vL}, v{vL}, v{vT1}")
    assert vL == vMc + 1 and vMc % 2 == 0
    g(f"s_lshl_b32 s{sTmp}, s{sWave}, 11")
    g(f"v_add_u32 v{vT0}, s{sTmp}, v{vVoff}")
    g(f"s_lshl_b32 s{sTmp}, s{sWave}, 3")
    g(f"v_and_b32 v{vT1}, 63, v0")
    g(f"v_mul_u32_u24 v{vT1}, {NW*8}, v{vT1}")
    g(f"v_add_u32 v{vT1}, s{sTmp}, v{vT1}")
    g(f"ds_write_b128 v{vT0}, {vr(vO,4)}")
    g(f"ds_write_b128 v{vT0}, {vr(vO+4,4)} offset:1024")
    g("s_mov_b64 exec, 0xf")
    g(f"ds_write_b64 v{vT1}, {vr(vMc,2)} offset:{LDS_ML}")
    g("s_mov_b64 exec, -1")
    g("s_waitcnt vmcnt(0) lgkmcnt(0)")
    g("s_barrier")
    if NT > CT:
        g(f"s_cmp_ge_u32 s{sWave}, {CT//64}")
        g("s_cbranch_scc1 L_skipcomb")
    vH = vT0; vAddr = vT1
    vML = vKV
    vOw = vKV + 2 * NW
    assert vOw + NW * OPT <= nv, (vOw + NW*OPT, nv)
    g(f"v_bfe_u32 v{vH}, v0, 2, 2")
    g(f"v_mul_u32_u24 v{vA}, {NW*8}, v{vH}")
    g(f"v_lshlrev_b32 v{vAddr}, 2, v0")
    for w2 in range(NW // 2):
        g(f"ds_read_b128 {vr(vML+4*w2,4)}, v{vA} offset:{LDS_ML+16*w2}")
    for w in range(NW):
        for k in range(OPT):
            g(f"ds_read_b32 v{vOw+w*OPT+k}, v{vAddr} offset:{w*2048+k*CT*4}")
    g("s_waitcnt lgkmcnt(0)")
    g(f"v_max_f32 v{vMc}, v{vML}, v{vML+2}")
    for w in range(2, NW, 2):
        g(f"v_max3_f32 v{vMc}, v{vMc}, v{vML+2*w}, v{vML+2*w+2}")
    for w in range(NW):
        g(f"v_sub_f32 v{vML+2*w}, v{vML+2*w}, v{vMc}")
    for w in range(NW):
        g(f"v_exp_f32 v{vML+2*w}, v{vML+2*w}")
    g("s_nop 0")
    g(f"v_mul_f32 v{vL}, v{vML}, v{vML+1}")
    for k in range(OPT):
        g(f"v_mul_f32 v{vO+k}, v{vML}, v{vOw+k}")
    for w in range(1, NW):
        g(f"v_fmac_f32 v{vL}, v{vML+2*w}, v{vML+2*w+1}")
        for k in range(OPT):
            g(f"v_fmac_f32 v{vO+k}, v{vML+2*w}, v{vOw+w*OPT+k}")
    g(f"s_lshl_b32 s{sTmp}, s2, 12")
    for k in range(OPT):
        g(f"buffer_store_dword v{vO+k}, v{vAddr}, s[{sW}:{sW+3}], s{sTmp} offen offset:{k*CT*4} sc1")
    g(f"v_lshlrev_b32 v{vA}, 3, v{vH}")
    g(f"s_cmp_lg_u32 s{sWave}, 0")
    g("s_cbranch_scc1 L_noml")
    g("s_mov_b64 exec, 0x1111")
    g(f"buffer_store_dwordx2 {vr(vMc,2)}, v{vA}, s[{sW}:{sW+3}], s{sTmp} offen offset:2048 sc1")
    g("s_mov_b64 exec, -1")
    g.lab("L_noml")
    g("s_waitcnt vmcnt(0)")
    if NT > CT:
        g.lab("L_skipcomb")
    g("s_barrier")
    g(f"s_cmp_lg_u32 s{sWave}, 0")
    g("s_cbranch_scc1 L_noatom")
    g("s_mov_b64 exec, 1")
    g(f"v_mov_b32 v{vS}, 1")
    g(f"v_mov_b32 v{vS+1}, 0")
    g(f"s_lshl_b32 s{sTmp2}, s{sGrp}, 2")
    g(f"buffer_atomic_add v{vS}, v{vS+1}, s[{sD}:{sD+3}], s{sTmp2} offen sc0")
    g(f"v_mov_b32 v{vS+2}, {LDS_FLAG}")
    g("s_waitcnt vmcnt(0)")
    g(f"ds_write_b32 v{vS+2}, v{vS}")
    g("s_mov_b64 exec, -1")
    g("s_waitcnt lgkmcnt(0)")
    g.lab("L_noatom")
    g("s_barrier")
    if NT > CT:
        g(f"s_cmp_ge_u32 s{sWave}, {CT//64}")
        g("s_cbranch_scc1 L_fin")
    g(f"v_mov_b32 v{vS+2}, {LDS_FLAG}")
    g(f"ds_read_b32 v{vS}, v{vS+2}")
    g("s_waitcnt lgkmcnt(0)")
    g(f"v_readfirstlane_b32 s{sTmp}, v{vS}")
    g(f"s_cmp_lg_u32 s{sTmp}, {NSPLIT-1}")
    g("s_cbranch_scc1 L_fin")
    g(f"s_lshl_b32 s{sTmp}, s{sGrp}, {12+int(math.log2(NSPLIT))}")
    vP = vKV
    vPo = vKV + 2 * NSPLIT
    assert vPo + NSPLIT * OPT <= nv
    for s in range(NSPLIT):
        g(f"buffer_load_dwordx2 {vr(vP+2*s,2)}, v{vA}, s[{sW}:{sW+3}], s{sTmp} offen offset:2048 sc1")
        for k in range(OPT):
            g(f"buffer_load_dword v{vPo+s*OPT+k}, v{vAddr}, s[{sW}:{sW+3}], s{sTmp} offen offset:{k*CT*4} sc1")
        if s != NSPLIT - 1:
            g(f"s_add_u32 s{sTmp}, s{sTmp}, 4096")
    g(f"v_lshlrev_b32 v{vS}, 8, v{vH}")
    g(f"v_bfe_u32 v{vS+1}, v0, 6, 2               ; g'")
    g(f"v_lshl_add_u32 v{vS}, v{vS+1}, 6, v{vS}")
    g(f"v_and_b32 v{vS+1}, 3, v0                  ; r")
    g(f"v_lshl_add_u32 v{vS}, v{vS+1}, 4, v{vS}")
    g(f"v_bfe_u32 v{vS+1}, v0, 4, 2               ; sel")
    g(f"v_lshl_add_u32 v{vS}, v{vS+1}, 1, v{vS}")
    if CT == 512:
        g(f"v_bfe_u32 v{vS+1}, v0, 8, 1               ; half")
        g(f"v_lshl_add_u32 v{vS}, v{vS+1}, 3, v{vS}")
    else:
        assert CT == 256
    g("s_waitcnt vmcnt(0)")
    g(f"v_max_f32 v{vMc}, v{vP}, v{vP+2}")
    for s in range(2, NSPLIT):
        g(f"v_max_f32 v{vMc}, v{vMc}, v{vP+2*s}")
    for s in range(NSPLIT):
        g(f"v_sub_f32 v{vP+2*s}, v{vP+2*s}, v{vMc}")
    for s in range(NSPLIT):
        g(f"v_exp_f32 v{vP+2*s}, v{vP+2*s}")
    g("s_nop 0")
    g(f"v_mul_f32 v{vL}, v{vP}, v{vP+1}")
    for k in range(OPT):
        g(f"v_mul_f32 v{vO+k}, v{vP}, v{vPo+k}")
    for s in range(1, NSPLIT):
        g(f"v_fmac_f32 v{vL}, v{vP+2*s}, v{vP+2*s+1}")
        for k in range(OPT):
            g(f"v_fmac_f32 v{vO+k}, v{vP+2*s}, v{vPo+s*OPT+k}")
    g(f"v_rcp_f32 v{vL}, v{vL}")
    g("s_nop 0")
    for k in range(OPT):
        g(f"v_mul_f32 v{vO+k}, v{vO+k}, v{vL}")
    for k in range(OPT):
        g(f"v_cvt_pk_bf16_f32 v{vO+k}, v{vO+k}, v{vO+k}")
    for k in range(OPT):
        g(f"buffer_store_short v{vO+k}, v{vS}, s[{sOut}:{sOut+3}], 0 offen offset:{k*8}")
    g.lab("L_fin")
    if stamps:
        g(f"s_memrealtime s[{sT0+6}:{sT0+7}]")
        g(f"s_getreg_b32 s{sT0+8}, hwreg(HW_REG_XCC_ID)")
        g(f"s_getreg_b32 s{sT0+9}, hwreg(HW_REG_HW_ID)")
        g("s_waitcnt lgkmcnt(0)")
        g(f"s_mul_i32 s{sTmp}, s2, {NW}")
        g(f"s_add_u32 s{sTmp}, s{sTmp}, s{sWave}")
        g(f"s_lshl_b32 s{sTmp}, s{sTmp}, 6")
        g(f"s_add_u32 s{sTmp}, s{sTmp}, {NWG*4096}")
        g("s_mov_b64 exec, 1")
        for j in range(10):
            g(f"v_mov_b32 v{vS+j}, s{sT0+j}")
        g(f"v_mov_b32 v{vS+12}, 0")
        g(f"buffer_store_dwordx4 {vr(vS,4)}, v{vS+12}, s[{sW}:{sW+3}], s{sTmp} offen")
        g(f"buffer_store_dwordx4 {vr(vS+4,4)}, v{vS+12}, s[{sW}:{sW+3}], s{sTmp} offen offset:16")
        g(f"buffer_store_dwordx2 {vr(vS+8,2)}, v{vS+12}, s[{sW}:{sW+3}], s{sTmp} offen offset:32")
    g.lab("L_done")
    g("s_endpgm")
    nvr = max(nv, 8)
    g.L.append('.section .rodata,"a"')
    g.L.append(".p2align 6")
    g.L.append(f".amdhsa_kernel {NAME}_kernel")
    g.L.append(f"  .amdhsa_next_free_vgpr {nvr}")
    g.L.append(f"  .amdhsa_next_free_sgpr 72")
    g.L.append(f"  .amdhsa_accum_offset {(nvr+3)//4*4}")
    g.L.append("  .amdhsa_group_segment_fixed_size 0")
    g.L.append("  .amdhsa_kernarg_size 48")
    g.L.append("  .amdhsa_user_sgpr_count 2")
    g.L.append("  .amdhsa_user_sgpr_kernarg_segment_ptr 1")
    g.L.append("  .amdhsa_system_sgpr_workgroup_id_x 1")
    g.L.append(".end_amdhsa_kernel")
    return g.text()

if __name__ == "__main__":
    ap = argparse.ArgumentParser()
    ap.add_argument("-o", default="cdna_kernels/" + NAME + ".s")
    ap.add_argument("--nw", type=int, default=16)
    ap.add_argument("--nsplit", type=int, default=4)
    ap.add_argument("--d", type=int, default=2)
    ap.add_argument("--ld", default="nt")
    ap.add_argument("--contig", action="store_true")
    ap.add_argument("--stamps", action="store_true")
    ap.add_argument("--swz", default=None)
    a = ap.parse_args()
    open(a.o, "w").write(gen(a.nw, a.nsplit, a.d, a.ld.replace("_", " ").replace("none", ""), not a.contig, a.stamps, tuple(int(x) for x in a.swz.split(",")) if a.swz else None))
```

```python
import sys, math, argparse
from gen import HDR, NAME, G, vr, f2u

def gen(NW=4, NSPLIT=4, A=5, waits=None, ldflags="nt", stamps=False):
    g = G()
    NG = 64
    NWG = NG * NSPLIT
    KEYS_WG = 8192 // NSPLIT
    TILES_WG = KEYS_WG // 16
    T = TILES_WG // NW
    assert T % 2 == 0
    CHUNK = KEYS_WG * 256
    NT = NW * 64
    CT = min(NT, 512)
    OPT = 512 // CT
    LDS_ML = NW * 2048
    LDS_FLAG = LDS_ML + 4 * NW * 8
    LDS = LDS_FLAG + 64
    cscale = (128 ** -0.5) * math.log2(math.e)
    if waits is None: waits = [A - 1]
    assert all(w <= A - 1 for w in waits) and A <= 12

    vKoff = 1; vVoff = 2; vM = 3; vMc = 4; vL = 5; vMask0 = 6; vMask1 = 7
    vT0 = 8; vT1 = 9; vA = 10; vMcN = 11
    vQ = 12; vO = 16; vS = 24; vB = 40; vKV = 58
    nv = max(vKV + 64, vKV + 2*NW + NW*OPT, vKV + 2*NSPLIT + NSPLIT*OPT)
    def slot(n): return vKV + (n % 16) * 4
    def X(i): return vB + 2 + 4 * i
    S = lambda i, r: vS + 4 * i + r

    sK = 16; sV = 20; sQ = 24; sW = 28; sOut = 32; sD = 36
    sGrp = 40; sSplit = 41; sWave = 42; sKo = 43; sVo = 44; sC = 45; sIt = 46; sTmp = 47; sTmp2 = 48
    sT0 = 50

    g.L.append(HDR.rstrip())
    g.L.append(f"; @launch grid=({NWG},1,1) block=({NT},1,1) lds={LDS}")
    g.L.append('.amdgcn_target "amdgcn-amd-amdhsa--gfx950"')
    g.L.append(".text")
    g.L.append(f".globl {NAME}_kernel")
    g.L.append(".p2align 8")
    g.L.append(f".type {NAME}_kernel,@function")
    g.lab(f"{NAME}_kernel")
    if stamps:
        g(f"s_memrealtime s[{sT0}:{sT0+1}]")
    g(f"s_cmp_ge_u32 s2, {NWG}")
    g("s_cbranch_scc1 L_done")
    g("s_load_dwordx8 s[4:11], s[0:1], 0")
    g("s_load_dwordx4 s[12:15], s[0:1], 32")
    g(f"v_lshrrev_b32 v{vT0}, 6, v0")
    g(f"v_and_b32 v{vVoff}, 63, v0                 ; lane")
    g(f"v_readfirstlane_b32 s{sWave}, v{vT0}")
    g(f"s_lshr_b32 s{sGrp}, s2, {int(math.log2(NSPLIT))}")
    g(f"v_and_b32 v{vT0}, 3, v{vVoff}               ; p / h")
    g(f"v_bfe_u32 v{vT1}, v{vVoff}, 2, 2")
    g(f"v_lshrrev_b32 v{vA}, 4, v{vVoff}            ; g")
    g(f"v_lshlrev_b32 v{vKoff}, 4, v{vT0}")
    g(f"v_lshl_add_u32 v{vKoff}, v{vT1}, 8, v{vKoff}")
    g(f"v_lshl_add_u32 v{vKoff}, v{vA}, 6, v{vKoff}")
    g(f"v_lshlrev_b32 v{vMcN}, 8, v{vT0}")
    g(f"v_lshl_add_u32 v{vMcN}, v{vT1}, 4, v{vMcN}")
    g(f"v_lshl_add_u32 v{vMcN}, v{vA}, 6, v{vMcN}")
    g(f"v_lshlrev_b32 v{vVoff}, 4, v{vVoff}         ; lane*16")
    g(f"s_lshl_b32 s{sKo}, s{sWave}, 12")
    stride = NW * 4096
    g(f"s_mov_b32 s{sVo}, s{sKo}")
    g(f"s_mul_i32 s{sTmp}, s2, {CHUNK}")
    g(f"s_lshl_b32 s{sTmp2}, s{sGrp}, 10")
    g(f"s_mov_b32 s{sK+3}, 0x20000")
    g(f"s_mov_b32 s{sV+3}, 0x20000")
    g(f"s_mov_b32 s{sQ+3}, 0x20000")
    g(f"s_mov_b32 s{sK+2}, {CHUNK}")
    g(f"s_mov_b32 s{sV+2}, {CHUNK}")
    g(f"s_mov_b32 s{sQ+2}, 1024")
    g("s_waitcnt lgkmcnt(0)")
    g(f"s_add_u32 s{sK}, s6, s{sTmp}")
    g(f"s_addc_u32 s{sK+1}, s7, 0")
    g(f"s_add_u32 s{sV}, s8, s{sTmp}")
    g(f"s_addc_u32 s{sV+1}, s9, 0")
    g(f"s_add_u32 s{sQ}, s4, s{sTmp2}")
    g(f"s_addc_u32 s{sQ+1}, s5, 0")
    def issue(n):
        p = n % 8
        if p < 4:
            g(f"buffer_load_dwordx4 {vr(slot(n),4)}, v{vKoff}, s[{sK}:{sK+3}], s{sKo} offen offset:{p*1024} {ldflags}")
            if p == 3: g(f"s_add_u32 s{sKo}, s{sKo}, {stride}")
        else:
            g(f"buffer_load_dwordx4 {vr(slot(n),4)}, v{vVoff}, s[{sV}:{sV+3}], s{sVo} offen offset:{(p-4)*1024} {ldflags}")
            if p == 7: g(f"s_add_u32 s{sVo}, s{sVo}, {stride}")
    g(f"buffer_load_dwordx4 {vr(vQ,4)}, v{vMcN}, s[{sQ}:{sQ+3}], 0 offen")
    for n in range(A):
        issue(n)
    g(f"s_mov_b32 s{sC}, {f2u(cscale):#x}")
    g(f"v_mov_b32 v{vM}, 0xff800000")
    g(f"v_mov_b32 v{vMc}, 0xff800000")
    g(f"v_mov_b32 v{vL}, 0")
    for r in range(8):
        g(f"v_mov_b32 v{vO+r}, 0")
    for r in range(18):
        g(f"v_mov_b32 v{vB+r}, 0")
    for r in range(8):
        g(f"v_mov_b32 v{slot(14)+r}, 0")
    g(f"v_and_b32 v{vT0}, 1, v{vT1}")
    g(f"v_lshlrev_b32 v{vT0}, 4, v{vT0}")
    g(f"v_mov_b32 v{vA}, 0xffff")
    g(f"v_lshlrev_b32 v{vA}, v{vT0}, v{vA}")
    g(f"v_cmp_gt_u32 vcc, 2, v{vT1}")
    g("s_nop 1")
    g(f"v_cndmask_b32 v{vMask0}, 0, v{vA}, vcc")
    g(f"v_cndmask_b32 v{vMask1}, v{vA}, 0, vcc")
    g(f"s_mov_b32 s{sW}, s14")
    g(f"s_mov_b32 s{sW+1}, s15")
    g(f"s_mov_b32 s{sW+2}, {NWG*4096 + (NWG*NW*64 if stamps else 0)}")
    g(f"s_mov_b32 s{sW+3}, 0x20000")
    g(f"s_add_u32 s{sOut}, s10, s{sTmp2}")
    g(f"s_addc_u32 s{sOut+1}, s11, 0")
    g(f"s_mov_b32 s{sOut+2}, 1024")
    g(f"s_mov_b32 s{sOut+3}, 0x20000")
    g(f"s_mov_b32 s{sD}, s12")
    g(f"s_mov_b32 s{sD+1}, s13")
    g(f"s_mov_b32 s{sD+2}, 256")
    g(f"s_mov_b32 s{sD+3}, 0x20000")
    g(f"s_mov_b32 s{sIt}, {T//2}")
    if stamps:
        g(f"s_waitcnt vmcnt({A-1})")
        g(f"s_memrealtime s[{sT0+2}:{sT0+3}]")
    def QK(m):
        i = m % 8
        g(f"v_mfma_f32_16x16x32_bf16 {vr(S(i,0),4)}, {vr(slot(m),4)}, {vr(vQ,4)}, 0")
    def PV(mv):
        i = mv % 8 - 4
        g(f"v_mfma_f32_16x16x32_bf16 {vr(vO,4)}, {vr(slot(mv),4)}, {vr(X(i),4)}, {vr(vO,4)}")
        g(f"v_mfma_f32_16x16x32_bf16 {vr(vO+4,4)}, {vr(slot(mv),4)}, {vr(X(i)-2,4)}, {vr(vO+4,4)}")
    def SMA():
        g("s_nop 3")
        for i in range(4):
            g(f"v_add_f32_dpp v{S(i,1)}, v{S(i,2)}, v{S(i,0)} row_ror:8 row_mask:0xf bank_mask:0x1")
        for i in range(4):
            g(f"v_add_f32_dpp v{S(i,1)}, v{S(i,0)}, v{S(i,2)} row_ror:8 row_mask:0xf bank_mask:0x4")
        for i in range(4):
            g(f"v_add_f32_dpp v{S(i,1)}, v{S(i,1)}, v{S(i,3)} row_ror:8 row_mask:0xf bank_mask:0x8")
        for i in range(4):
            g(f"v_add_f32_dpp v{S(i,1)}, v{S(i,3)}, v{S(i,1)} row_ror:8 row_mask:0xf bank_mask:0x2")
        for i in range(4):
            g(f"v_add_f32_dpp v{S(i,0)}, v{S(i,1)}, v{S(i,1)} row_ror:4 row_mask:0xf bank_mask:0xf")
    def SMB():
        g(f"v_max3_f32 v{vT0}, v{S(0,0)}, v{S(1,0)}, v{S(2,0)}")
        g(f"v_max3_f32 v{vT0}, v{vT0}, v{S(3,0)}, v{vM}")
        g(f"v_mov_b32 v{vT1}, v{vT0}")
        g("s_nop 1")
        g(f"v_permlane32_swap_b32 v{vT0}, v{vT1}")
        g("s_nop 1")
        g(f"v_max_f32 v{vT0}, v{vT0}, v{vT1}")
        g(f"v_mov_b32 v{vT1}, v{vT0}")
        g("s_nop 1")
        g(f"v_permlane16_swap_b32 v{vT0}, v{vT1}")
        g("s_nop 1")
        g(f"v_max_f32 v{vM}, v{vT0}, v{vT1}")
        g(f"v_mul_f32 v{vMcN}, s{sC}, v{vM}")
        g(f"v_sub_f32 v{vA}, v{vMc}, v{vMcN}")
        g(f"v_exp_f32 v{vA}, v{vA}")
        for i in range(4):
            g(f"v_fma_f32 v{S(i,0)}, v{S(i,0)}, s{sC}, -v{vMcN}")
        for i in range(4):
            g(f"v_exp_f32 v{S(i,0)}, v{S(i,0)}")
        g(f"v_mov_b32 v{vMc}, v{vMcN}")
    def SMC():
        for r in range(8):
            g(f"v_mul_f32 v{vO+r}, v{vO+r}, v{vA}")
        for i in range(4):
            g(f"v_cvt_pk_bf16_f32 v{S(i,1)}, v{S(i,0)}, v{S(i,0)}")
        for i in range(4):
            g(f"v_and_b32 v{X(i)}, v{S(i,1)}, v{vMask0}")
            g(f"v_and_b32 v{X(i)+1}, v{S(i,1)}, v{vMask1}")
        g(f"v_fma_f32 v{vL}, v{vL}, v{vA}, v{S(0,0)}")
        g(f"v_add_f32 v{S(1,0)}, v{S(1,0)}, v{S(2,0)}")
        g(f"v_add_f32 v{vL}, v{vL}, v{S(3,0)}")
        g(f"v_add_f32 v{vL}, v{vL}, v{S(1,0)}")
    g.lab("L_loop")
    for m in range(16):
        p = m % 8
        g(f"s_waitcnt vmcnt({waits[m % len(waits)]})")
        issue(m + A)
        if p < 4:
            QK(m)
        if p == 0: PV(m - 2 + 16)
        if p == 1: PV(m - 2 + 16)
        if p == 4: SMA()
        if p == 5: SMB()
        if p == 6: SMC(); PV(m - 2)
        if p == 7: PV(m - 2)
    g(f"s_sub_u32 s{sIt}, s{sIt}, 1")
    g(f"s_cmp_lg_u32 s{sIt}, 0")
    g("s_cbranch_scc1 L_loop")
    PV(14); PV(15)
    if stamps:
        g(f"s_memrealtime s[{sT0+4}:{sT0+5}]")
    g(f"v_mov_b32 v{vT1}, v{vL}")
    g("s_nop 1")
    g(f"v_permlane32_swap_b32 v{vL}, v{vT1}")
    g("s_nop 1")
    g(f"v_add_f32 v{vL}, v{vL}, v{vT1}")
    g(f"v_mov_b32 v{vT1}, v{vL}")
    g("s_nop 1")
    g(f"v_permlane16_swap_b32 v{vL}, v{vT1}")
    g("s_nop 1")
    g(f"v_add_f32 v{vL}, v{vL}, v{vT1}")
    g(f"s_lshl_b32 s{sTmp}, s{sWave}, 11")
    g(f"v_add_u32 v{vT0}, s{sTmp}, v{vVoff}")
    g(f"s_lshl_b32 s{sTmp}, s{sWave}, 3")
    g(f"v_and_b32 v{vT1}, 63, v0")
    g(f"v_mul_u32_u24 v{vT1}, {NW*8}, v{vT1}")
    g(f"v_add_u32 v{vT1}, s{sTmp}, v{vT1}")
    g(f"ds_write_b128 v{vT0}, {vr(vO,4)}")
    g(f"ds_write_b128 v{vT0}, {vr(vO+4,4)} offset:1024")
    g("s_mov_b64 exec, 0xf")
    g(f"ds_write_b64 v{vT1}, {vr(vMc,2)} offset:{LDS_ML}")
    g("s_mov_b64 exec, -1")
    g("s_waitcnt vmcnt(0) lgkmcnt(0)")
    g("s_barrier")
    if NT > CT:
        g(f"s_cmp_ge_u32 s{sWave}, {CT//64}")
        g("s_cbranch_scc1 L_skipcomb")
    vH = vT0; vAddr = vT1
    vML = vKV; vOw = vKV + 2 * NW
    g(f"v_bfe_u32 v{vH}, v0, 2, 2")
    g(f"v_mul_u32_u24 v{vA}, {NW*8}, v{vH}")
    g(f"v_lshlrev_b32 v{vAddr}, 2, v0")
    for w2 in range(NW // 2):
        g(f"ds_read_b128 {vr(vML+4*w2,4)}, v{vA} offset:{LDS_ML+16*w2}")
    for w in range(NW):
        for k in range(OPT):
            g(f"ds_read_b32 v{vOw+w*OPT+k}, v{vAddr} offset:{w*2048+k*CT*4}")
    g("s_waitcnt lgkmcnt(0)")
    g(f"v_max_f32 v{vMc}, v{vML}, v{vML+2}")
    for w in range(2, NW, 2):
        g(f"v_max3_f32 v{vMc}, v{vMc}, v{vML+2*w}, v{vML+2*w+2}")
    for w in range(NW):
        g(f"v_sub_f32 v{vML+2*w}, v{vML+2*w}, v{vMc}")
    for w in range(NW):
        g(f"v_exp_f32 v{vML+2*w}, v{vML+2*w}")
    g("s_nop 0")
    g(f"v_mul_f32 v{vL}, v{vML}, v{vML+1}")
    for k in range(OPT):
        g(f"v_mul_f32 v{vO+k}, v{vML}, v{vOw+k}")
    for w in range(1, NW):
        g(f"v_fmac_f32 v{vL}, v{vML+2*w}, v{vML+2*w+1}")
        for k in range(OPT):
            g(f"v_fmac_f32 v{vO+k}, v{vML+2*w}, v{vOw+w*OPT+k}")
    g(f"s_lshl_b32 s{sTmp}, s2, 12")
    for k in range(OPT):
        g(f"buffer_store_dword v{vO+k}, v{vAddr}, s[{sW}:{sW+3}], s{sTmp} offen offset:{k*CT*4} sc1")
    g(f"v_lshlrev_b32 v{vA}, 3, v{vH}")
    g(f"s_cmp_lg_u32 s{sWave}, 0")
    g("s_cbranch_scc1 L_noml")
    g("s_mov_b64 exec, 0x1111")
    g(f"buffer_store_dwordx2 {vr(vMc,2)}, v{vA}, s[{sW}:{sW+3}], s{sTmp} offen offset:2048 sc1")
    g("s_mov_b64 exec, -1")
    g.lab("L_noml")
    g("s_waitcnt vmcnt(0)")
    if NT > CT:
        g.lab("L_skipcomb")
    g("s_barrier")
    g(f"s_cmp_lg_u32 s{sWave}, 0")
    g("s_cbranch_scc1 L_noatom")
    g("s_mov_b64 exec, 1")
    g(f"v_mov_b32 v{vS}, 1")
    g(f"v_mov_b32 v{vS+1}, 0")
    g(f"s_lshl_b32 s{sTmp2}, s{sGrp}, 2")
    g(f"buffer_atomic_add v{vS}, v{vS+1}, s[{sD}:{sD+3}], s{sTmp2} offen sc0")
    g(f"v_mov_b32 v{vS+2}, {LDS_FLAG}")
    g("s_waitcnt vmcnt(0)")
    g(f"ds_write_b32 v{vS+2}, v{vS}")
    g("s_mov_b64 exec, -1")
    g("s_waitcnt lgkmcnt(0)")
    g.lab("L_noatom")
    g("s_barrier")
    if NT > CT:
        g(f"s_cmp_ge_u32 s{sWave}, {CT//64}")
        g("s_cbranch_scc1 L_fin")
    g(f"v_mov_b32 v{vS+2}, {LDS_FLAG}")
    g(f"ds_read_b32 v{vS}, v{vS+2}")
    g("s_waitcnt lgkmcnt(0)")
    g(f"v_readfirstlane_b32 s{sTmp}, v{vS}")
    g(f"s_cmp_lg_u32 s{sTmp}, {NSPLIT-1}")
    g("s_cbranch_scc1 L_fin")
    g(f"s_lshl_b32 s{sTmp}, s{sGrp}, {12+int(math.log2(NSPLIT))}")
    vP = vKV; vPo = vKV + 2 * NSPLIT
    for s in range(NSPLIT):
        g(f"buffer_load_dwordx2 {vr(vP+2*s,2)}, v{vA}, s[{sW}:{sW+3}], s{sTmp} offen offset:2048 sc1")
        for k in range(OPT):
            g(f"buffer_load_dword v{vPo+s*OPT+k}, v{vAddr}, s[{sW}:{sW+3}], s{sTmp} offen offset:{k*CT*4} sc1")
        if s != NSPLIT - 1:
            g(f"s_add_u32 s{sTmp}, s{sTmp}, 4096")
    g(f"v_lshlrev_b32 v{vS}, 8, v{vH}")
    g(f"v_bfe_u32 v{vS+1}, v0, 6, 2               ; g'")
    g(f"v_lshl_add_u32 v{vS}, v{vS+1}, 6, v{vS}")
    g(f"v_and_b32 v{vS+1}, 3, v0                  ; r")
    g(f"v_lshl_add_u32 v{vS}, v{vS+1}, 4, v{vS}")
    g(f"v_bfe_u32 v{vS+1}, v0, 4, 2               ; sel")
    g(f"v_lshl_add_u32 v{vS}, v{vS+1}, 1, v{vS}")
    if CT == 512:
        g(f"v_bfe_u32 v{vS+1}, v0, 8, 1               ; half")
        g(f"v_lshl_add_u32 v{vS}, v{vS+1}, 3, v{vS}")
    else:
        assert CT == 256
    g("s_waitcnt vmcnt(0)")
    g(f"v_max_f32 v{vMc}, v{vP}, v{vP+2}")
    for s in range(2, NSPLIT):
        g(f"v_max_f32 v{vMc}, v{vMc}, v{vP+2*s}")
    for s in range(NSPLIT):
        g(f"v_sub_f32 v{vP+2*s}, v{vP+2*s}, v{vMc}")
    for s in range(NSPLIT):
        g(f"v_exp_f32 v{vP+2*s}, v{vP+2*s}")
    g("s_nop 0")
    g(f"v_mul_f32 v{vL}, v{vP}, v{vP+1}")
    for k in range(OPT):
        g(f"v_mul_f32 v{vO+k}, v{vP}, v{vPo+k}")
    for s in range(1, NSPLIT):
        g(f"v_fmac_f32 v{vL}, v{vP+2*s}, v{vP+2*s+1}")
        for k in range(OPT):
            g(f"v_fmac_f32 v{vO+k}, v{vP+2*s}, v{vPo+s*OPT+k}")
    g(f"v_rcp_f32 v{vL}, v{vL}")
    g("s_nop 0")
    for k in range(OPT):
        g(f"v_mul_f32 v{vO+k}, v{vO+k}, v{vL}")
    for k in range(OPT):
        g(f"v_cvt_pk_bf16_f32 v{vO+k}, v{vO+k}, v{vO+k}")
    for k in range(OPT):
        g(f"buffer_store_short v{vO+k}, v{vS}, s[{sOut}:{sOut+3}], 0 offen offset:{k*8}")
    g.lab("L_fin")
    if stamps:
        g(f"s_memrealtime s[{sT0+6}:{sT0+7}]")
        g(f"s_getreg_b32 s{sT0+8}, hwreg(HW_REG_XCC_ID)")
        g(f"s_mov_b32 s{sT0+9}, 0")
        g("s_waitcnt lgkmcnt(0)")
        g(f"s_mul_i32 s{sTmp}, s2, {NW}")
        g(f"s_add_u32 s{sTmp}, s{sTmp}, s{sWave}")
        g(f"s_lshl_b32 s{sTmp}, s{sTmp}, 6")
        g(f"s_add_u32 s{sTmp}, s{sTmp}, {NWG*4096}")
        g("s_mov_b64 exec, 1")
        for j in range(10):
            g(f"v_mov_b32 v{vS+j}, s{sT0+j}")
        g(f"v_mov_b32 v{vS+12}, 0")
        g(f"buffer_store_dwordx4 {vr(vS,4)}, v{vS+12}, s[{sW}:{sW+3}], s{sTmp} offen")
        g(f"buffer_store_dwordx4 {vr(vS+4,4)}, v{vS+12}, s[{sW}:{sW+3}], s{sTmp} offen offset:16")
        g(f"buffer_store_dwordx2 {vr(vS+8,2)}, v{vS+12}, s[{sW}:{sW+3}], s{sTmp} offen offset:32")
    g.lab("L_done")
    g("s_endpgm")
    g.L.append('.section .rodata,"a"')
    g.L.append(".p2align 6")
    g.L.append(f".amdhsa_kernel {NAME}_kernel")
    g.L.append(f"  .amdhsa_next_free_vgpr {nv}")
    g.L.append(f"  .amdhsa_next_free_sgpr 72")
    g.L.append(f"  .amdhsa_accum_offset {(nv+3)//4*4}")
    g.L.append("  .amdhsa_group_segment_fixed_size 0")
    g.L.append("  .amdhsa_kernarg_size 48")
    g.L.append("  .amdhsa_user_sgpr_count 2")
    g.L.append("  .amdhsa_user_sgpr_kernarg_segment_ptr 1")
    g.L.append("  .amdhsa_system_sgpr_workgroup_id_x 1")
    g.L.append(".end_amdhsa_kernel")
    return g.text()

if __name__ == "__main__":
    ap = argparse.ArgumentParser()
    ap.add_argument("-o", default="cdna_kernels/" + NAME + ".s")
    ap.add_argument("--nw", type=int, default=4)
    ap.add_argument("--nsplit", type=int, default=4)
    ap.add_argument("--a", type=int, default=5)
    ap.add_argument("--waits", default=None)
    ap.add_argument("--ld", default="nt")
    ap.add_argument("--stamps", action="store_true")
    a = ap.parse_args()
    w = [int(x) for x in a.waits.split(",")] if a.waits else None
    open(a.o, "w").write(gen(a.nw, a.nsplit, a.a, w, a.ld.replace("_", " ").replace("none", ""), a.stamps))
```

```python
import sys, math, argparse
from gen import HDR, NAME, G, vr, f2u

def gen(A=5, waits=None, ldflags="nt", stamps=False, early=True, forcefb=False, chkit=4):
    g = G()
    NW = 4; NSPLIT = 4; NG = 64
    NWG = NG * NSPLIT
    T = 32
    GB = 2 << 20
    NT = 320
    LDS_ML = NW * 2048
    LDS_OK = LDS_ML + 4 * NW * 8
    LDS_FLAG = LDS_OK + 16
    LDS = LDS_FLAG + 16
    cscale = (128 ** -0.5) * math.log2(math.e)
    if waits is None: waits = [A - 1]
    assert all(w <= A - 1 for w in waits) and A <= 12
    R2 = NWG * 4096
    STBASE = 2 * NWG * 4096

    vKoff = 1; vVoff = 2; vM = 3; vMc = 4; vL = 5; vMask0 = 6; vMask1 = 7
    vT0 = 8; vT1 = 9; vA = 10; vMcN = 11
    vQ = 12; vO = 16; vS = 24; vB = 40; vKV = 58
    vR = vS; vP = vS + 12
    vOo = vKV + 64; vMo = vKV + 65
    nv = vKV + 66
    def slot(n): return vKV + (n % 16) * 4
    def X(i): return vB + 2 + 4 * i
    S = lambda i, r: vS + 4 * i + r

    sK = 16; sV = 20; sQ = 24; sW = 28; sOut = 32; sDv = 36
    sGrp = 40; sSplit = 41; sWave = 42; sKo = 43; sVo = 44; sC = 45; sIt = 46; sTmp = 47; sTmp2 = 48; sChk = 49
    sT0 = 50
    sDp = 60; sSl = 62; sSh = 66; sOK = 67; sExp = 68

    g.L.append(HDR.rstrip())
    if stamps: g.L.append(f"; STAMPBASE {STBASE}")
    g.L.append(f"; @launch grid=({NWG},1,1) block=({NT},1,1) lds={LDS}")
    g.L.append('.amdgcn_target "amdgcn-amd-amdhsa--gfx950"')
    g.L.append(".text")
    g.L.append(f".globl {NAME}_kernel")
    g.L.append(".p2align 8")
    g.L.append(f".type {NAME}_kernel,@function")
    g.lab(f"{NAME}_kernel")
    if stamps:
        g(f"s_memrealtime s[{sT0}:{sT0+1}]")
    g(f"s_cmp_ge_u32 s2, {NWG}")
    g("s_cbranch_scc1 L_done")
    g("s_load_dwordx8 s[4:11], s[0:1], 0")
    g("s_load_dwordx4 s[12:15], s[0:1], 32")
    g(f"v_lshrrev_b32 v{vT0}, 6, v0")
    g(f"v_and_b32 v{vVoff}, 63, v0                 ; lane")
    g(f"v_readfirstlane_b32 s{sWave}, v{vT0}")
    g.c("wg = 8*jj + x ; split = jj&3 ; group = x + 8*(jj>>2)")
    g(f"s_and_b32 s{sGrp}, s2, 7")
    g(f"s_lshr_b32 s{sTmp}, s2, 5")
    g(f"s_lshl_b32 s{sTmp}, s{sTmp}, 3")
    g(f"s_add_u32 s{sGrp}, s{sGrp}, s{sTmp}")
    g(f"s_bfe_u32 s{sSplit}, s2, 0x20003")
    g(f"v_and_b32 v{vT0}, 3, v{vVoff}               ; p / h")
    g(f"v_bfe_u32 v{vT1}, v{vVoff}, 2, 2")
    g(f"v_lshrrev_b32 v{vA}, 4, v{vVoff}            ; g")
    g(f"v_lshlrev_b32 v{vKoff}, 4, v{vT0}")
    g(f"v_lshl_add_u32 v{vKoff}, v{vT1}, 8, v{vKoff}")
    g(f"v_lshl_add_u32 v{vKoff}, v{vA}, 6, v{vKoff}")
    g(f"v_lshlrev_b32 v{vMcN}, 8, v{vT0}")
    g(f"v_lshl_add_u32 v{vMcN}, v{vT1}, 4, v{vMcN}")
    g(f"v_lshl_add_u32 v{vMcN}, v{vA}, 6, v{vMcN}")
    g(f"v_lshlrev_b32 v{vVoff}, 4, v{vVoff}         ; lane*16")
    g(f"s_lshl_b32 s{sKo}, s{sSplit}, 2")
    g(f"s_add_u32 s{sKo}, s{sKo}, s{sWave}")
    g(f"s_lshl_b32 s{sKo}, s{sKo}, 12")
    stride = 16 * 4096
    g(f"s_mov_b32 s{sVo}, s{sKo}")
    g(f"s_lshl_b32 s{sTmp}, s{sGrp}, 21")
    g(f"s_lshl_b32 s{sTmp2}, s{sGrp}, 10")
    for r in (sK, sV, sQ, sW):
        g(f"s_mov_b32 s{r+3}, 0x20000")
    g(f"s_mov_b32 s{sK+2}, {GB}")
    g(f"s_mov_b32 s{sV+2}, {GB}")
    g(f"s_mov_b32 s{sQ+2}, 1024")
    g(f"s_mov_b32 s{sW+2}, {STBASE + (NWG*NW*64 if stamps else 0)}")
    g(f"s_lshl_b32 s{sSl}, s2, 12")
    g(f"s_getreg_b32 s{sExp}, hwreg(HW_REG_XCC_ID, 0, 4)")
    g(f"s_cmp_eq_u32 s{sWave}, 4")
    g("s_cbranch_scc1 L_helper")
    g("s_waitcnt lgkmcnt(0)")
    g(f"s_add_u32 s{sK}, s6, s{sTmp}")
    g(f"s_addc_u32 s{sK+1}, s7, 0")
    g(f"s_add_u32 s{sV}, s8, s{sTmp}")
    g(f"s_addc_u32 s{sV+1}, s9, 0")
    g(f"s_add_u32 s{sQ}, s4, s{sTmp2}")
    g(f"s_addc_u32 s{sQ+1}, s5, 0")
    def issue(n):
        p = n % 8
        if p < 4:
            g(f"buffer_load_dwordx4 {vr(slot(n),4)}, v{vKoff}, s[{sK}:{sK+3}], s{sKo} offen offset:{p*1024} {ldflags}")
            if p == 3: g(f"s_add_u32 s{sKo}, s{sKo}, {stride}")
        else:
            g(f"buffer_load_dwordx4 {vr(slot(n),4)}, v{vVoff}, s[{sV}:{sV+3}], s{sVo} offen offset:{(p-4)*1024} {ldflags}")
            if p == 7: g(f"s_add_u32 s{sVo}, s{sVo}, {stride}")
    g(f"buffer_load_dwordx4 {vr(vQ,4)}, v{vMcN}, s[{sQ}:{sQ+3}], 0 offen")
    for n in range(A):
        issue(n)
    g(f"s_mov_b32 s{sW}, s14")
    g(f"s_mov_b32 s{sW+1}, s15")
    g(f"s_mov_b32 s{sC}, {f2u(cscale):#x}")
    g(f"v_mov_b32 v{vM}, 0xff800000")
    g(f"v_mov_b32 v{vMc}, 0xff800000")
    g(f"v_mov_b32 v{vL}, 0")
    for r in range(8):
        g(f"v_mov_b32 v{vO+r}, 0")
    for r in range(18):
        g(f"v_mov_b32 v{vB+r}, 0")
    for r in range(8):
        g(f"v_mov_b32 v{slot(14)+r}, 0")
    g(f"v_and_b32 v{vT0}, 1, v{vT1}")
    g(f"v_lshlrev_b32 v{vT0}, 4, v{vT0}")
    g(f"v_mov_b32 v{vA}, 0xffff")
    g(f"v_lshlrev_b32 v{vA}, v{vT0}, v{vA}")
    g(f"v_cmp_gt_u32 vcc, 2, v{vT1}")
    g("s_nop 1")
    g(f"v_cndmask_b32 v{vMask0}, 0, v{vA}, vcc")
    g(f"v_cndmask_b32 v{vMask1}, v{vA}, 0, vcc")
    g(f"s_add_u32 s{sOut}, s10, s{sTmp2}")
    g(f"s_addc_u32 s{sOut+1}, s11, 0")
    g(f"s_mov_b32 s{sOut+2}, 1024")
    g(f"s_mov_b32 s{sOut+3}, 0x20000")
    g(f"s_mov_b32 s{sDv}, s12")
    g(f"s_mov_b32 s{sDv+1}, s13")
    g(f"s_mov_b32 s{sDv+2}, 256")
    g(f"s_mov_b32 s{sDv+3}, 0x20000")
    g(f"s_lshl_b32 s{sTmp}, s{sGrp}, 2")
    g(f"s_add_u32 s{sDp}, s12, s{sTmp}")
    g(f"s_addc_u32 s{sDp+1}, s13, 0")
    for k in (1, 2, 3):
        g(f"s_xor_b32 s{sSl+k}, s{sSl}, {k*8*4096}")
    g(f"s_lshl_b32 s{sSh}, s{sWave}, 3")
    g.c("expected counter word when all four workgroups sit on this XCC: 4 << (3*xcc); ids > 7 never match")
    g(f"s_mul_i32 s{sTmp}, s{sExp}, 3")
    g(f"s_lshl_b32 s{sTmp}, 4, s{sTmp}")
    g(f"s_cmp_gt_u32 s{sExp}, 7")
    g(f"s_cselect_b32 s{sExp}, -1, s{sTmp}")
    if forcefb:
        g(f"s_mov_b32 s{sExp}, -1")
    g(f"s_mov_b32 s{sChk}, 0")
    g(f"v_lshlrev_b32 v{vOo}, 3, v0")
    g(f"v_bfe_u32 v{vMo}, v0, 1, 2")
    g(f"v_lshlrev_b32 v{vMo}, 3, v{vMo}")
    g(f"s_lshl_b32 s{sTmp}, s{sWave}, 5")
    g(f"v_add_u32 v{vMo}, s{sTmp}, v{vMo}")
    g(f"s_mov_b32 s{sIt}, {T//2}")
    if stamps:
        g(f"s_waitcnt vmcnt({A-1})")
        g(f"s_memrealtime s[{sT0+2}:{sT0+3}]")
    def QK(m):
        i = m % 8
        g(f"v_mfma_f32_16x16x32_bf16 {vr(S(i,0),4)}, {vr(slot(m),4)}, {vr(vQ,4)}, 0")
    def PV(mv):
        i = mv % 8 - 4
        g(f"v_mfma_f32_16x16x32_bf16 {vr(vO,4)}, {vr(slot(mv),4)}, {vr(X(i),4)}, {vr(vO,4)}")
        g(f"v_mfma_f32_16x16x32_bf16 {vr(vO+4,4)}, {vr(slot(mv),4)}, {vr(X(i)-2,4)}, {vr(vO+4,4)}")
    def SMA():
        g("s_nop 3")
        for i in range(4):
            g(f"v_add_f32_dpp v{S(i,1)}, v{S(i,2)}, v{S(i,0)} row_ror:8 row_mask:0xf bank_mask:0x1")
        for i in range(4):
            g(f"v_add_f32_dpp v{S(i,1)}, v{S(i,0)}, v{S(i,2)} row_ror:8 row_mask:0xf bank_mask:0x4")
        for i in range(4):
            g(f"v_add_f32_dpp v{S(i,1)}, v{S(i,1)}, v{S(i,3)} row_ror:8 row_mask:0xf bank_mask:0x8")
        for i in range(4):
            g(f"v_add_f32_dpp v{S(i,1)}, v{S(i,3)}, v{S(i,1)} row_ror:8 row_mask:0xf bank_mask:0x2")
        for i in range(4):
            g(f"v_add_f32_dpp v{S(i,0)}, v{S(i,1)}, v{S(i,1)} row_ror:4 row_mask:0xf bank_mask:0xf")
    def SMB():
        g(f"v_max3_f32 v{vT0}, v{S(0,0)}, v{S(1,0)}, v{S(2,0)}")
        g(f"v_max3_f32 v{vT0}, v{vT0}, v{S(3,0)}, v{vM}")
        g(f"v_mov_b32 v{vT1}, v{vT0}")
        g("s_nop 1")
        g(f"v_permlane32_swap_b32 v{vT0}, v{vT1}")
        g("s_nop 1")
        g(f"v_max_f32 v{vT0}, v{vT0}, v{vT1}")
        g(f"v_mov_b32 v{vT1}, v{vT0}")
        g("s_nop 1")
        g(f"v_permlane16_swap_b32 v{vT0}, v{vT1}")
        g("s_nop 1")
        g(f"v_max_f32 v{vM}, v{vT0}, v{vT1}")
        g(f"v_mul_f32 v{vMcN}, s{sC}, v{vM}")
        g(f"v_sub_f32 v{vA}, v{vMc}, v{vMcN}")
        g(f"v_exp_f32 v{vA}, v{vA}")
        for i in range(4):
            g(f"v_fma_f32 v{S(i,0)}, v{S(i,0)}, s{sC}, -v{vMcN}")
        for i in range(4):
            g(f"v_exp_f32 v{S(i,0)}, v{S(i,0)}")
        g(f"v_mov_b32 v{vMc}, v{vMcN}")
    def SMC():
        for r in range(8):
            g(f"v_mul_f32 v{vO+r}, v{vO+r}, v{vA}")
        for i in range(4):
            g(f"v_cvt_pk_bf16_f32 v{S(i,1)}, v{S(i,0)}, v{S(i,0)}")
        for i in range(4):
            g(f"v_and_b32 v{X(i)}, v{S(i,1)}, v{vMask0}")
            g(f"v_and_b32 v{X(i)+1}, v{S(i,1)}, v{vMask1}")
        g(f"v_fma_f32 v{vL}, v{vL}, v{vA}, v{S(0,0)}")
        g(f"v_add_f32 v{S(1,0)}, v{S(1,0)}, v{S(2,0)}")
        g(f"v_add_f32 v{vL}, v{vL}, v{S(3,0)}")
        g(f"v_add_f32 v{vL}, v{vL}, v{S(1,0)}")
    g.lab("L_loop")
    for m in range(16):
        p = m % 8
        g(f"s_waitcnt vmcnt({waits[m % len(waits)]})")
        issue(m + A)
        if p < 4:
            QK(m)
        if p == 0: PV(m - 2 + 16)
        if p == 1: PV(m - 2 + 16)
        if p == 4: SMA()
        if p == 5: SMB()
        if p == 6: SMC(); PV(m - 2)
        if p == 7: PV(m - 2)
    g(f"s_cmp_lg_u32 s{sIt}, {chkit}")
    g("s_cbranch_scc1 L_nochk")
    g(f"s_load_dword s{sChk}, s[{sDp}:{sDp+1}], 0x0")
    g.lab("L_nochk")
    g(f"s_sub_u32 s{sIt}, s{sIt}, 1")
    g(f"s_cmp_lg_u32 s{sIt}, 0")
    g("s_cbranch_scc1 L_loop")
    PV(14); PV(15)
    if stamps:
        g(f"s_memrealtime s[{sT0+4}:{sT0+5}]")
    def round_loads(extra=0):
        for k in (1, 2, 3):
            so = f"s{sSl+k}"
            if extra:
                g(f"s_add_u32 s{sTmp}, s{sSl+k}, {extra}"); so = f"s{sTmp}"
            g(f"buffer_load_dwordx2 {vr(vR+4*(k-1),2)}, v{vOo}, s[{sW}:{sW+3}], {so} offen sc1")
            g(f"buffer_load_dwordx2 {vr(vR+4*(k-1)+2,2)}, v{vMo}, s[{sW}:{sW+3}], {so} offen offset:2048 sc1")
    def publish(flags="", extra=0):
        so = f"s{sSl}"
        if extra:
            g(f"s_add_u32 s{sTmp}, s{sSl}, {extra}"); so = f"s{sTmp}"
        g(f"buffer_store_dwordx2 {vr(vP,2)}, v{vOo}, s[{sW}:{sW+3}], {so} offen {flags}")
        g("s_mov_b64 exec, 0x55")
        g(f"buffer_store_dwordx2 {vr(vP+2,2)}, v{vMo}, s[{sW}:{sW+3}], {so} offen offset:2048 {flags}")
        g("s_mov_b64 exec, -1")
    def round_check(target_ok):
        g(f"v_max3_u32 v{vT0}, v{vR}, v{vR+1}, v{vR+2}")
        for r in range(3, 11, 2):
            g(f"v_max3_u32 v{vT0}, v{vT0}, v{vR+r}, v{vR+r+1}")
        g(f"v_max_u32 v{vT0}, v{vT0}, v{vR+11}")
        g(f"v_cmp_eq_u32 vcc, -1, v{vT0}")
        g(f"s_cbranch_vccz {target_ok}")
    g("s_waitcnt lgkmcnt(0)")
    g(f"s_and_b32 s{sChk}, s{sChk}, 0xffffff")
    g(f"s_cmp_eq_u32 s{sChk}, s{sExp}")
    g(f"s_cselect_b32 s{sOK}, 1, 0")
    if early:
        g("s_cbranch_scc0 L_noearly")
        round_loads()
        g.lab("L_noearly")
    g(f"v_mov_b32 v{vT1}, v{vL}")
    g(f"v_mov_b32 v{vM}, s{sOK}")
    g("s_nop 0")
    g(f"v_permlane32_swap_b32 v{vL}, v{vT1}")
    g("s_nop 1")
    g(f"v_add_f32 v{vL}, v{vL}, v{vT1}")
    g(f"v_mov_b32 v{vT1}, v{vL}")
    g("s_nop 1")
    g(f"v_permlane16_swap_b32 v{vL}, v{vT1}")
    g("s_nop 1")
    g(f"v_add_f32 v{vL}, v{vL}, v{vT1}")
    g(f"s_lshl_b32 s{sTmp}, s{sWave}, 11")
    g(f"v_add_u32 v{vT0}, s{sTmp}, v{vVoff}")
    g(f"v_lshlrev_b32 v{vT1}, 1, v{vVoff}")
    g(f"v_add_u32 v{vT1}, s{sSh}, v{vT1}           ; + wave*8")
    g(f"s_lshl_b32 s{sTmp}, s{sWave}, 2")
    g(f"v_mov_b32 v{vA}, s{sTmp}")
    g(f"ds_write_b128 v{vT0}, {vr(vO,4)}")
    g(f"ds_write_b128 v{vT0}, {vr(vO+4,4)} offset:1024")
    g("s_mov_b64 exec, 0xf")
    g(f"ds_write_b64 v{vT1}, {vr(vMc,2)} offset:{LDS_ML}")
    g(f"ds_write_b32 v{vA}, v{vM} offset:{LDS_OK}")
    g("s_mov_b64 exec, -1")
    vH = vMask0; vZero = vMask1; vOutA = vMcN
    vML = vB; vOw = vB + 8; vOKs = vO
    g(f"v_bfe_u32 v{vH}, v0, 1, 2")
    g(f"v_lshlrev_b32 v{vA}, 5, v{vH}")
    g(f"v_mov_b32 v{vZero}, 0")
    g(f"v_lshlrev_b32 v{vOutA}, 8, v{vH}")
    g(f"v_bfe_u32 v{vT0}, v0, 5, 2")
    g(f"v_lshl_add_u32 v{vOutA}, v{vT0}, 6, v{vOutA}")
    g(f"v_and_b32 v{vT0}, 1, v0")
    g(f"v_lshl_add_u32 v{vOutA}, v{vT0}, 5, v{vOutA}")
    g(f"v_bfe_u32 v{vT0}, v0, 7, 1")
    g(f"v_lshl_add_u32 v{vOutA}, v{vT0}, 3, v{vOutA}")
    g(f"v_bfe_u32 v{vT0}, v0, 3, 2")
    g(f"v_lshl_add_u32 v{vOutA}, v{vT0}, 1, v{vOutA}")
    g("s_waitcnt lgkmcnt(0)")
    g("s_barrier")
    g(f"ds_read_b128 {vr(vML,4)}, v{vA} offset:{LDS_ML}")
    g(f"ds_read_b128 {vr(vML+4,4)}, v{vA} offset:{LDS_ML+16}")
    for w in range(NW):
        g(f"ds_read_b64 {vr(vOw+2*w,2)}, v{vOo} offset:{w*2048}")
    g(f"ds_read_b128 {vr(vOKs,4)}, v{vZero} offset:{LDS_OK}")
    g("s_waitcnt lgkmcnt(5)")
    g(f"v_max_f32 v{vP+2}, v{vML}, v{vML+2}")
    g(f"v_max3_f32 v{vP+2}, v{vP+2}, v{vML+4}, v{vML+6}")
    for w in range(NW):
        g(f"v_sub_f32 v{vML+2*w}, v{vML+2*w}, v{vP+2}")
    for w in range(NW):
        g(f"v_exp_f32 v{vML+2*w}, v{vML+2*w}")
    g("s_waitcnt lgkmcnt(0)")
    g(f"v_and_b32 v{vOKs}, v{vOKs}, v{vOKs+1}")
    g(f"v_and_b32 v{vOKs+2}, v{vOKs+2}, v{vOKs+3}")
    g(f"v_and_b32 v{vOKs}, v{vOKs}, v{vOKs+2}")
    g(f"v_mul_f32 v{vP+3}, v{vML}, v{vML+1}")
    g(f"v_readfirstlane_b32 s{sOK}, v{vOKs}")
    g(f"v_mul_f32 v{vP}, v{vML}, v{vOw}")
    g(f"v_mul_f32 v{vP+1}, v{vML}, v{vOw+1}")
    for w in range(1, NW):
        g(f"v_fmac_f32 v{vP+3}, v{vML+2*w}, v{vML+2*w+1}")
        g(f"v_fmac_f32 v{vP}, v{vML+2*w}, v{vOw+2*w}")
        g(f"v_fmac_f32 v{vP+1}, v{vML+2*w}, v{vOw+2*w+1}")
    g(f"s_mov_b32 s{sTmp}, 0xfffffffe")
    for r in range(4):
        g(f"v_min_u32 v{vP+r}, s{sTmp}, v{vP+r}")
    g(f"s_cmp_eq_u32 s{sOK}, 0")
    g("s_cbranch_scc1 L_slow")
    if early:
        g("s_waitcnt vmcnt(0)")
        round_check("L_final")
    publish()
    round_loads()
    g("s_waitcnt vmcnt(0)")
    round_check("L_final")
    g.lab("L_round2")
    round_loads()
    g("s_waitcnt vmcnt(0)")
    round_check("L_final")
    g("s_branch L_fin")
    g.lab("L_slow")
    g.c("placement unknown or different XCCs: publish in both regions, then one returning atomic decides")
    publish()
    publish("sc1", R2)
    g("s_waitcnt vmcnt(0)")
    g("s_barrier")
    g(f"s_cmp_lg_u32 s{sWave}, 0")
    g("s_cbranch_scc1 L_noatom")
    g("s_mov_b64 exec, 1")
    g(f"v_mov_b32 v{vT0}, 0x1000000")
    g(f"s_lshl_b32 s{sTmp}, s{sGrp}, 2")
    g(f"buffer_atomic_add v{vT0}, v{vZero}, s[{sDv}:{sDv+3}], s{sTmp} offen sc0")
    g("s_waitcnt vmcnt(0)")
    g(f"ds_write_b32 v{vZero}, v{vT0} offset:{LDS_FLAG}")
    g("s_mov_b64 exec, -1")
    g("s_waitcnt lgkmcnt(0)")
    g.lab("L_noatom")
    g("s_barrier")
    g(f"ds_read_b32 v{vT0}, v{vZero} offset:{LDS_FLAG}")
    g("s_waitcnt lgkmcnt(0)")
    g(f"v_readfirstlane_b32 s{sChk}, v{vT0}")
    g("s_nop 3")
    g(f"s_and_b32 s{sTmp}, s{sChk}, 0xffffff")
    g(f"s_cmp_eq_u32 s{sTmp}, s{sExp}")
    g("s_cbranch_scc1 L_round2")
    g(f"s_lshr_b32 s{sTmp}, s{sChk}, 24")
    g(f"s_cmp_lg_u32 s{sTmp}, 3")
    g("s_cbranch_scc1 L_fin")
    round_loads(R2)
    g("s_waitcnt vmcnt(0)")
    g.lab("L_final")
    R = lambda k, r: (vP + r) if k == 0 else (vR + 4 * (k - 1) + r)
    g(f"v_max_f32 v{vMc}, v{R(0,2)}, v{R(1,2)}")
    g(f"v_max3_f32 v{vMc}, v{vMc}, v{R(2,2)}, v{R(3,2)}")
    for k in range(4):
        g(f"v_sub_f32 v{R(k,2)}, v{R(k,2)}, v{vMc}")
    for k in range(4):
        g(f"v_exp_f32 v{R(k,2)}, v{R(k,2)}")
    g("s_nop 0")
    for k in range(4):
        for r in (0, 1, 3):
            g(f"v_mul_f32 v{R(k,r)}, v{R(k,r)}, v{R(k,2)}")
    for r in (3, 0, 1):
        g(f"v_add_f32 v{R(0,r)}, v{R(0,r)}, v{R(1,r)}")
        g(f"v_add_f32 v{R(2,r)}, v{R(2,r)}, v{R(3,r)}")
    for r in (3, 0, 1):
        g(f"v_add_f32 v{R(0,r)}, v{R(0,r)}, v{R(2,r)}")
    g(f"v_rcp_f32 v{vL}, v{R(0,3)}")
    g("s_nop 0")
    g(f"v_mul_f32 v{R(0,0)}, v{R(0,0)}, v{vL}")
    g(f"v_mul_f32 v{R(0,1)}, v{R(0,1)}, v{vL}")
    g(f"v_cvt_pk_bf16_f32 v{R(0,0)}, v{R(0,0)}, v{R(0,1)}")
    g(f"buffer_store_short v{R(0,0)}, v{vOutA}, s[{sOut}:{sOut+3}], 0 offen")
    g(f"buffer_store_short_d16_hi v{R(0,0)}, v{vOutA}, s[{sOut}:{sOut+3}], 0 offen offset:16")
    g.lab("L_fin")
    if stamps:
        g(f"s_memrealtime s[{sT0+6}:{sT0+7}]")
        g(f"s_getreg_b32 s{sT0+8}, hwreg(HW_REG_XCC_ID)")
        g(f"s_mov_b32 s{sT0+9}, s{sOK}")
        g("s_waitcnt lgkmcnt(0)")
        g(f"s_mul_i32 s{sTmp}, s2, {NW}")
        g(f"s_add_u32 s{sTmp}, s{sTmp}, s{sWave}")
        g(f"s_lshl_b32 s{sTmp}, s{sTmp}, 6")
        g(f"s_add_u32 s{sTmp}, s{sTmp}, {STBASE}")
        g("s_mov_b64 exec, 1")
        for j in range(10):
            g(f"v_mov_b32 v{vKV+j}, s{sT0+j}")
        g(f"v_mov_b32 v{vKV+12}, 0")
        g(f"buffer_store_dwordx4 {vr(vKV,4)}, v{vKV+12}, s[{sW}:{sW+3}], s{sTmp} offen")
        g(f"buffer_store_dwordx4 {vr(vKV+4,4)}, v{vKV+12}, s[{sW}:{sW+3}], s{sTmp} offen offset:16")
        g(f"buffer_store_dwordx2 {vr(vKV+8,2)}, v{vKV+12}, s[{sW}:{sW+3}], s{sTmp} offen offset:32")
    g.lab("L_done")
    g("s_endpgm")
    g.lab("L_helper")
    g.c("helper wave: mark this workgroup's partial slot as empty, then count this workgroup (and its XCC) in")
    for r in range(4):
        g(f"v_mov_b32 v{vS+r}, -1")
    g(f"s_cmp_gt_u32 s{sExp}, 7")
    g("s_cbranch_scc1 L_done")
    g(f"s_mul_i32 s{sExp}, s{sExp}, 3")
    g(f"s_lshl_b32 s{sExp}, 1, s{sExp}")
    g(f"s_lshl_b32 s{sTmp}, s{sGrp}, 2")
    g("s_waitcnt lgkmcnt(0)")
    g(f"s_mov_b32 s{sW}, s14")
    g(f"s_mov_b32 s{sW+1}, s15")
    for w in range(2):
        g(f"buffer_store_dwordx4 {vr(vS,4)}, v{vVoff}, s[{sW}:{sW+3}], s{sSl} offen offset:{w*1024}")
    g("s_mov_b64 exec, 0xff")
    g(f"buffer_store_dwordx4 {vr(vS,4)}, v{vVoff}, s[{sW}:{sW+3}], s{sSl} offen offset:2048")
    g(f"s_add_u32 s{sDp}, s12, s{sTmp}")
    g(f"s_addc_u32 s{sDp+1}, s13, 0")
    g("s_waitcnt vmcnt(0)")
    g(f"s_atomic_add s{sExp}, s[{sDp}:{sDp+1}], 0x0")
    g("s_endpgm")
    g.L.append('.section .rodata,"a"')
    g.L.append(".p2align 6")
    g.L.append(f".amdhsa_kernel {NAME}_kernel")
    g.L.append(f"  .amdhsa_next_free_vgpr {nv}")
    g.L.append(f"  .amdhsa_next_free_sgpr 72")
    g.L.append(f"  .amdhsa_accum_offset {(nv+3)//4*4}")
    g.L.append("  .amdhsa_group_segment_fixed_size 0")
    g.L.append("  .amdhsa_kernarg_size 48")
    g.L.append("  .amdhsa_user_sgpr_count 2")
    g.L.append("  .amdhsa_user_sgpr_kernarg_segment_ptr 1")
    g.L.append("  .amdhsa_system_sgpr_workgroup_id_x 1")
    g.L.append(".end_amdhsa_kernel")
    return g.text()

if __name__ == "__main__":
    ap = argparse.ArgumentParser()
    ap.add_argument("-o", default="cdna_kernels/" + NAME + ".s")
    ap.add_argument("--a", type=int, default=5)
    ap.add_argument("--waits", default=None)
    ap.add_argument("--ld", default="nt")
    ap.add_argument("--stamps", action="store_true")
    ap.add_argument("--noearly", action="store_true")
    ap.add_argument("--forcefb", action="store_true")
    ap.add_argument("--chkit", type=int, default=4)
    a = ap.parse_args()
    w = [int(x) for x in a.waits.split(",")] if a.waits else None
    open(a.o, "w").write(gen(a.a, w, a.ld.replace("_", " ").replace("none", ""), a.stamps, not a.noearly, a.forcefb, a.chkit))
```

```python
import sys, math, argparse
from gen import HDR, NAME, G, vr, f2u

def gen(A=5, waits=None, ldflags="nt", stamps=False, early=True, forcefb=False, chkit=4, cpf=False):
    g = G()
    NW = 4; NSPLIT = 4; NG = 64
    NWG = NG * NSPLIT
    T = 32
    GB = 2 << 20
    NT = 320
    LDS_ML = NW * 2048
    LDS_OK = LDS_ML + 4 * NW * 8
    LDS_FLAG = LDS_OK + 16
    LDS = LDS_FLAG + 16
    cscale = (128 ** -0.5) * math.log2(math.e)
    if waits is None: waits = [A - 1]
    assert all(w <= A - 1 for w in waits) and A <= 12
    R2 = NWG * 4096
    STBASE = 2 * NWG * 4096

    vKoff = 1; vVoff = 2; vM = 3; vMc = 4; vL = 5; vMask0 = 6; vMask1 = 7
    vT0 = 8; vT1 = 9; vA = 10; vMcN = 11
    vQ = 12; vO = 16; vS = 24; vB = 40; vKV = 58
    vR = vS; vP = vS + 12
    vOo = vKV + 64; vMo = vKV + 65
    nv = vKV + 66
    def slot(n): return vKV + (n % 16) * 4
    def X(i): return vB + 2 + 4 * i
    S = lambda i, r: vS + 4 * i + r

    sK = 16; sV = 20; sQ = 24; sW = 28; sOut = 32; sDv = 36
    sGrp = 40; sSplit = 41; sWave = 42; sKo = 43; sVo = 44; sC = 45; sIt = 46; sTmp = 47; sTmp2 = 48; sChk = 49
    sT0 = 50
    sDp = 60; sSl = 62; sSh = 66; sOK = 67; sExp = 68

    g.L.append(HDR.rstrip())
    if stamps: g.L.append(f"; STAMPBASE {STBASE}")
    g.L.append(f"; @launch grid=({NWG},1,1) block=({NT},1,1) lds={LDS}")
    g.L.append('.amdgcn_target "amdgcn-amd-amdhsa--gfx950"')
    g.L.append(".text")
    g.L.append(f".globl {NAME}_kernel")
    g.L.append(".p2align 8")
    g.L.append(f".type {NAME}_kernel,@function")
    g.lab(f"{NAME}_kernel")
    if stamps:
        g(f"s_memrealtime s[{sT0}:{sT0+1}]")
    g(f"s_cmp_ge_u32 s2, {NWG}")
    g("s_cbranch_scc1 L_done")
    g("s_load_dwordx8 s[4:11], s[0:1], 0")
    g("s_load_dwordx4 s[12:15], s[0:1], 32")
    if cpf:
        g.c("pull this kernel's own code into L2 (instruction fetch then misses only to L2)")
        g(f"s_getpc_b64 s[{sDv}:{sDv+1}]")
        g.lab("L_pc")
        g(f"s_sub_u32 s{sDv}, s{sDv}, L_pc-{NAME}_kernel")
        g(f"s_subb_u32 s{sDv+1}, s{sDv+1}, 0")
        g(f"s_mov_b32 s{sDv+2}, L_codeend-{NAME}_kernel")
        g(f"s_mov_b32 s{sDv+3}, 0x20000")
        g(f"v_lshlrev_b32 v{vKoff}, 4, v0")
        g(f"buffer_load_dwordx4 {vr(slot(12),4)}, v{vKoff}, s[{sDv}:{sDv+3}], 0 offen")
    g(f"v_lshrrev_b32 v{vT0}, 6, v0")
    g(f"v_and_b32 v{vVoff}, 63, v0                 ; lane")
    g(f"v_readfirstlane_b32 s{sWave}, v{vT0}")
    g.c("wg = 8*jj + x ; split = jj&3 ; group = x + 8*(jj>>2)")
    g(f"s_and_b32 s{sGrp}, s2, 7")
    g(f"s_lshr_b32 s{sTmp}, s2, 5")
    g(f"s_lshl_b32 s{sTmp}, s{sTmp}, 3")
    g(f"s_add_u32 s{sGrp}, s{sGrp}, s{sTmp}")
    g(f"s_bfe_u32 s{sSplit}, s2, 0x20003")
    g(f"v_and_b32 v{vT0}, 3, v{vVoff}               ; p / h")
    g(f"v_bfe_u32 v{vT1}, v{vVoff}, 2, 2")
    g(f"v_lshrrev_b32 v{vA}, 4, v{vVoff}            ; g")
    g(f"v_lshlrev_b32 v{vKoff}, 4, v{vT0}")
    g(f"v_lshl_add_u32 v{vKoff}, v{vT1}, 8, v{vKoff}")
    g(f"v_lshl_add_u32 v{vKoff}, v{vA}, 6, v{vKoff}")
    g(f"v_lshlrev_b32 v{vMcN}, 8, v{vT0}")
    g(f"v_lshl_add_u32 v{vMcN}, v{vT1}, 4, v{vMcN}")
    g(f"v_lshl_add_u32 v{vMcN}, v{vA}, 6, v{vMcN}")
    g(f"v_lshlrev_b32 v{vVoff}, 4, v{vVoff}         ; lane*16")
    g(f"s_lshl_b32 s{sKo}, s{sSplit}, 2")
    g(f"s_add_u32 s{sKo}, s{sKo}, s{sWave}")
    g(f"s_lshl_b32 s{sKo}, s{sKo}, 12")
    stride = 16 * 4096
    g(f"s_mov_b32 s{sVo}, s{sKo}")
    g(f"s_lshl_b32 s{sTmp}, s{sGrp}, 21")
    g(f"s_lshl_b32 s{sTmp2}, s{sGrp}, 10")
    for r in (sK, sV, sQ, sW):
        g(f"s_mov_b32 s{r+3}, 0x20000")
    g(f"s_mov_b32 s{sK+2}, {GB}")
    g(f"s_mov_b32 s{sV+2}, {GB}")
    g(f"s_mov_b32 s{sQ+2}, 1024")
    g(f"s_mov_b32 s{sW+2}, {STBASE + (NWG*NW*64 if stamps else 0)}")
    g(f"s_lshl_b32 s{sSl}, s2, 12")
    g(f"s_getreg_b32 s{sExp}, hwreg(HW_REG_XCC_ID, 0, 4)")
    g(f"s_cmp_eq_u32 s{sWave}, 4")
    g("s_cbranch_scc1 L_helper")
    g("s_waitcnt lgkmcnt(0)")
    g(f"s_add_u32 s{sK}, s6, s{sTmp}")
    g(f"s_addc_u32 s{sK+1}, s7, 0")
    g(f"s_add_u32 s{sV}, s8, s{sTmp}")
    g(f"s_addc_u32 s{sV+1}, s9, 0")
    g(f"s_add_u32 s{sQ}, s4, s{sTmp2}")
    g(f"s_addc_u32 s{sQ+1}, s5, 0")
    def issue(n):
        p = n % 8
        if p < 4:
            g(f"buffer_load_dwordx4 {vr(slot(n),4)}, v{vKoff}, s[{sK}:{sK+3}], s{sKo} offen offset:{p*1024} {ldflags}")
            if p == 3: g(f"s_add_u32 s{sKo}, s{sKo}, {stride}")
        else:
            g(f"buffer_load_dwordx4 {vr(slot(n),4)}, v{vVoff}, s[{sV}:{sV+3}], s{sVo} offen offset:{(p-4)*1024} {ldflags}")
            if p == 7: g(f"s_add_u32 s{sVo}, s{sVo}, {stride}")
    g(f"buffer_load_dwordx4 {vr(vQ,4)}, v{vMcN}, s[{sQ}:{sQ+3}], 0 offen")
    for n in range(A):
        issue(n)
    g(f"s_mov_b32 s{sW}, s14")
    g(f"s_mov_b32 s{sW+1}, s15")
    g(f"s_mov_b32 s{sC}, {f2u(cscale):#x}")
    g(f"v_mov_b32 v{vM}, 0xff800000")
    g(f"v_mov_b32 v{vMc}, 0xff800000")
    g(f"v_mov_b32 v{vL}, 0")
    for r in range(8):
        g(f"v_mov_b32 v{vO+r}, 0")
    for r in range(18):
        g(f"v_mov_b32 v{vB+r}, 0")
    for r in range(8):
        g(f"v_mov_b32 v{slot(14)+r}, 0")
    g(f"v_and_b32 v{vT0}, 1, v{vT1}")
    g(f"v_lshlrev_b32 v{vT0}, 4, v{vT0}")
    g(f"v_mov_b32 v{vA}, 0xffff")
    g(f"v_lshlrev_b32 v{vA}, v{vT0}, v{vA}")
    g(f"v_cmp_gt_u32 vcc, 2, v{vT1}")
    g("s_nop 1")
    g(f"v_cndmask_b32 v{vMask0}, 0, v{vA}, vcc")
    g(f"v_cndmask_b32 v{vMask1}, v{vA}, 0, vcc")
    g(f"s_add_u32 s{sOut}, s10, s{sTmp2}")
    g(f"s_addc_u32 s{sOut+1}, s11, 0")
    g(f"s_mov_b32 s{sOut+2}, 1024")
    g(f"s_mov_b32 s{sOut+3}, 0x20000")
    g(f"s_mov_b32 s{sDv}, s12")
    g(f"s_mov_b32 s{sDv+1}, s13")
    g(f"s_mov_b32 s{sDv+2}, 256")
    g(f"s_mov_b32 s{sDv+3}, 0x20000")
    g(f"s_lshl_b32 s{sTmp}, s{sGrp}, 2")
    g(f"s_add_u32 s{sDp}, s12, s{sTmp}")
    g(f"s_addc_u32 s{sDp+1}, s13, 0")
    for k in (1, 2, 3):
        g(f"s_xor_b32 s{sSl+k}, s{sSl}, {k*8*4096}")
    g(f"s_lshl_b32 s{sSh}, s{sWave}, 3")
    g.c("expected counter word when all four workgroups sit on this XCC: 4 << (3*xcc); ids > 7 never match")
    g(f"s_mul_i32 s{sTmp}, s{sExp}, 3")
    g(f"s_lshl_b32 s{sTmp}, 4, s{sTmp}")
    g(f"s_cmp_gt_u32 s{sExp}, 7")
    g(f"s_cselect_b32 s{sExp}, -1, s{sTmp}")
    if forcefb:
        g(f"s_mov_b32 s{sExp}, -1")
    g(f"s_mov_b32 s{sChk}, 0")
    g(f"v_lshlrev_b32 v{vOo}, 3, v0")
    g(f"v_bfe_u32 v{vMo}, v0, 1, 2")
    g(f"v_lshlrev_b32 v{vMo}, 3, v{vMo}")
    g(f"s_lshl_b32 s{sTmp}, s{sWave}, 5")
    g(f"v_add_u32 v{vMo}, s{sTmp}, v{vMo}")
    g(f"s_mov_b32 s{sIt}, {T//2}")
    if stamps:
        g(f"s_waitcnt vmcnt({A-1})")
        g(f"s_memrealtime s[{sT0+2}:{sT0+3}]")
    def QK(m):
        i = m % 8
        g(f"v_mfma_f32_16x16x32_bf16 {vr(S(i,0),4)}, {vr(slot(m),4)}, {vr(vQ,4)}, 0")
    def PV(mv):
        i = mv % 8 - 4
        g(f"v_mfma_f32_16x16x32_bf16 {vr(vO,4)}, {vr(slot(mv),4)}, {vr(X(i),4)}, {vr(vO,4)}")
        g(f"v_mfma_f32_16x16x32_bf16 {vr(vO+4,4)}, {vr(slot(mv),4)}, {vr(X(i)-2,4)}, {vr(vO+4,4)}")
    def SMA():
        g("s_nop 3")
        for i in range(4):
            g(f"v_add_f32_dpp v{S(i,1)}, v{S(i,2)}, v{S(i,0)} row_ror:8 row_mask:0xf bank_mask:0x1")
        for i in range(4):
            g(f"v_add_f32_dpp v{S(i,1)}, v{S(i,0)}, v{S(i,2)} row_ror:8 row_mask:0xf bank_mask:0x4")
        for i in range(4):
            g(f"v_add_f32_dpp v{S(i,1)}, v{S(i,1)}, v{S(i,3)} row_ror:8 row_mask:0xf bank_mask:0x8")
        for i in range(4):
            g(f"v_add_f32_dpp v{S(i,1)}, v{S(i,3)}, v{S(i,1)} row_ror:8 row_mask:0xf bank_mask:0x2")
        for i in range(4):
            g(f"v_add_f32_dpp v{S(i,0)}, v{S(i,1)}, v{S(i,1)} row_ror:4 row_mask:0xf bank_mask:0xf")
    def SMB():
        g(f"v_max3_f32 v{vT0}, v{S(0,0)}, v{S(1,0)}, v{S(2,0)}")
        g(f"v_max3_f32 v{vT0}, v{vT0}, v{S(3,0)}, v{vM}")
        g(f"v_mov_b32 v{vT1}, v{vT0}")
        g("s_nop 1")
        g(f"v_permlane32_swap_b32 v{vT0}, v{vT1}")
        g("s_nop 1")
        g(f"v_max_f32 v{vT0}, v{vT0}, v{vT1}")
        g(f"v_mov_b32 v{vT1}, v{vT0}")
        g("s_nop 1")
        g(f"v_permlane16_swap_b32 v{vT0}, v{vT1}")
        g("s_nop 1")
        g(f"v_max_f32 v{vM}, v{vT0}, v{vT1}")
        g(f"v_mul_f32 v{vMcN}, s{sC}, v{vM}")
        g(f"v_sub_f32 v{vA}, v{vMc}, v{vMcN}")
        g(f"v_exp_f32 v{vA}, v{vA}")
        for i in range(4):
            g(f"v_fma_f32 v{S(i,0)}, v{S(i,0)}, s{sC}, -v{vMcN}")
        for i in range(4):
            g(f"v_exp_f32 v{S(i,0)}, v{S(i,0)}")
        g(f"v_mov_b32 v{vMc}, v{vMcN}")
    def SMC():
        for r in range(8):
            g(f"v_mul_f32 v{vO+r}, v{vO+r}, v{vA}")
        for i in range(4):
            g(f"v_cvt_pk_bf16_f32 v{S(i,1)}, v{S(i,0)}, v{S(i,0)}")
        for i in range(4):
            g(f"v_and_b32 v{X(i)}, v{S(i,1)}, v{vMask0}")
            g(f"v_and_b32 v{X(i)+1}, v{S(i,1)}, v{vMask1}")
        g(f"v_fma_f32 v{vL}, v{vL}, v{vA}, v{S(0,0)}")
        g(f"v_add_f32 v{S(1,0)}, v{S(1,0)}, v{S(2,0)}")
        g(f"v_add_f32 v{vL}, v{vL}, v{S(3,0)}")
        g(f"v_add_f32 v{vL}, v{vL}, v{S(1,0)}")
    g.lab("L_loop")
    for m in range(16):
        p = m % 8
        g(f"s_waitcnt vmcnt({waits[m % len(waits)]})")
        issue(m + A)
        if p < 4:
            QK(m)
        if p == 0: PV(m - 2 + 16)
        if p == 1: PV(m - 2 + 16)
        if p == 4: SMA()
        if p == 5: SMB()
        if p == 6: SMC(); PV(m - 2)
        if p == 7: PV(m - 2)
    g(f"s_cmp_lg_u32 s{sIt}, {chkit}")
    g("s_cbranch_scc1 L_nochk")
    g(f"s_load_dword s{sChk}, s[{sDp}:{sDp+1}], 0x0")
    g.lab("L_nochk")
    g(f"s_sub_u32 s{sIt}, s{sIt}, 1")
    g(f"s_cmp_lg_u32 s{sIt}, 0")
    g("s_cbranch_scc1 L_loop")
    PV(14); PV(15)
    if stamps:
        g(f"s_memrealtime s[{sT0+4}:{sT0+5}]")
    def round_loads(extra=0):
        for k in (1, 2, 3):
            so = f"s{sSl+k}"
            if extra:
                g(f"s_add_u32 s{sTmp}, s{sSl+k}, {extra}"); so = f"s{sTmp}"
            g(f"buffer_load_dwordx2 {vr(vR+4*(k-1),2)}, v{vOo}, s[{sW}:{sW+3}], {so} offen sc1")
            g(f"buffer_load_dwordx2 {vr(vR+4*(k-1)+2,2)}, v{vMo}, s[{sW}:{sW+3}], {so} offen offset:2048 sc1")
    def publish(flags="", extra=0):
        so = f"s{sSl}"
        if extra:
            g(f"s_add_u32 s{sTmp}, s{sSl}, {extra}"); so = f"s{sTmp}"
        g(f"buffer_store_dwordx2 {vr(vP,2)}, v{vOo}, s[{sW}:{sW+3}], {so} offen {flags}")
        g("s_mov_b64 exec, 0x55")
        g(f"buffer_store_dwordx2 {vr(vP+2,2)}, v{vMo}, s[{sW}:{sW+3}], {so} offen offset:2048 {flags}")
        g("s_mov_b64 exec, -1")
    def round_check(target_ok):
        g(f"v_max3_u32 v{vT0}, v{vR}, v{vR+1}, v{vR+2}")
        for r in range(3, 11, 2):
            g(f"v_max3_u32 v{vT0}, v{vT0}, v{vR+r}, v{vR+r+1}")
        g(f"v_max_u32 v{vT0}, v{vT0}, v{vR+11}")
        g(f"v_cmp_eq_u32 vcc, -1, v{vT0}")
        g(f"s_cbranch_vccz {target_ok}")
    g("s_waitcnt lgkmcnt(0)")
    g(f"s_and_b32 s{sChk}, s{sChk}, 0xffffff")
    g(f"s_cmp_eq_u32 s{sChk}, s{sExp}")
    g(f"s_cselect_b32 s{sOK}, 1, 0")
    if early:
        g("s_cbranch_scc0 L_noearly")
        round_loads()
        g.lab("L_noearly")
    g(f"v_mov_b32 v{vT1}, v{vL}")
    g(f"v_mov_b32 v{vM}, s{sOK}")
    g("s_nop 0")
    g(f"v_permlane32_swap_b32 v{vL}, v{vT1}")
    g("s_nop 1")
    g(f"v_add_f32 v{vL}, v{vL}, v{vT1}")
    g(f"v_mov_b32 v{vT1}, v{vL}")
    g("s_nop 1")
    g(f"v_permlane16_swap_b32 v{vL}, v{vT1}")
    g("s_nop 1")
    g(f"v_add_f32 v{vL}, v{vL}, v{vT1}")
    g(f"s_lshl_b32 s{sTmp}, s{sWave}, 11")
    g(f"v_add_u32 v{vT0}, s{sTmp}, v{vVoff}")
    g(f"v_lshlrev_b32 v{vT1}, 1, v{vVoff}")
    g(f"v_add_u32 v{vT1}, s{sSh}, v{vT1}           ; + wave*8")
    g(f"s_lshl_b32 s{sTmp}, s{sWave}, 2")
    g(f"v_mov_b32 v{vA}, s{sTmp}")
    g(f"ds_write_b128 v{vT0}, {vr(vO,4)}")
    g(f"ds_write_b128 v{vT0}, {vr(vO+4,4)} offset:1024")
    g("s_mov_b64 exec, 0xf")
    g(f"ds_write_b64 v{vT1}, {vr(vMc,2)} offset:{LDS_ML}")
    g(f"ds_write_b32 v{vA}, v{vM} offset:{LDS_OK}")
    g("s_mov_b64 exec, -1")
    vH = vMask0; vZero = vMask1; vOutA = vMcN
    vML = vB; vOw = vB + 8; vOKs = vO
    g(f"v_bfe_u32 v{vH}, v0, 1, 2")
    g(f"v_lshlrev_b32 v{vA}, 5, v{vH}")
    g(f"v_mov_b32 v{vZero}, 0")
    g(f"v_lshlrev_b32 v{vOutA}, 8, v{vH}")
    g(f"v_bfe_u32 v{vT0}, v0, 5, 2")
    g(f"v_lshl_add_u32 v{vOutA}, v{vT0}, 6, v{vOutA}")
    g(f"v_and_b32 v{vT0}, 1, v0")
    g(f"v_lshl_add_u32 v{vOutA}, v{vT0}, 5, v{vOutA}")
    g(f"v_bfe_u32 v{vT0}, v0, 7, 1")
    g(f"v_lshl_add_u32 v{vOutA}, v{vT0}, 3, v{vOutA}")
    g(f"v_bfe_u32 v{vT0}, v0, 3, 2")
    g(f"v_lshl_add_u32 v{vOutA}, v{vT0}, 1, v{vOutA}")
    g("s_waitcnt lgkmcnt(0)")
    g("s_barrier")
    g(f"ds_read_b128 {vr(vML,4)}, v{vA} offset:{LDS_ML}")
    g(f"ds_read_b128 {vr(vML+4,4)}, v{vA} offset:{LDS_ML+16}")
    for w in range(NW):
        g(f"ds_read_b64 {vr(vOw+2*w,2)}, v{vOo} offset:{w*2048}")
    g(f"ds_read_b128 {vr(vOKs,4)}, v{vZero} offset:{LDS_OK}")
    g("s_waitcnt lgkmcnt(5)")
    g(f"v_max_f32 v{vP+2}, v{vML}, v{vML+2}")
    g(f"v_max3_f32 v{vP+2}, v{vP+2}, v{vML+4}, v{vML+6}")
    for w in range(NW):
        g(f"v_sub_f32 v{vML+2*w}, v{vML+2*w}, v{vP+2}")
    for w in range(NW):
        g(f"v_exp_f32 v{vML+2*w}, v{vML+2*w}")
    g("s_waitcnt lgkmcnt(0)")
    g(f"v_and_b32 v{vOKs}, v{vOKs}, v{vOKs+1}")
    g(f"v_and_b32 v{vOKs+2}, v{vOKs+2}, v{vOKs+3}")
    g(f"v_and_b32 v{vOKs}, v{vOKs}, v{vOKs+2}")
    g(f"v_mul_f32 v{vP+3}, v{vML}, v{vML+1}")
    g(f"v_readfirstlane_b32 s{sOK}, v{vOKs}")
    g(f"v_mul_f32 v{vP}, v{vML}, v{vOw}")
    g(f"v_mul_f32 v{vP+1}, v{vML}, v{vOw+1}")
    for w in range(1, NW):
        g(f"v_fmac_f32 v{vP+3}, v{vML+2*w}, v{vML+2*w+1}")
        g(f"v_fmac_f32 v{vP}, v{vML+2*w}, v{vOw+2*w}")
        g(f"v_fmac_f32 v{vP+1}, v{vML+2*w}, v{vOw+2*w+1}")
    g(f"s_mov_b32 s{sTmp}, 0xfffffffe")
    for r in range(4):
        g(f"v_min_u32 v{vP+r}, s{sTmp}, v{vP+r}")
    g(f"s_cmp_eq_u32 s{sOK}, 0")
    g("s_cbranch_scc1 L_slow")
    if early:
        g("s_waitcnt vmcnt(0)")
        round_check("L_final")
    publish()
    round_loads()
    g("s_waitcnt vmcnt(0)")
    round_check("L_final")
    g.lab("L_round2")
    round_loads()
    g("s_waitcnt vmcnt(0)")
    round_check("L_final")
    g("s_branch L_fin")
    g.lab("L_slow")
    g.c("placement unknown or different XCCs: publish in both regions, then one returning atomic decides")
    publish()
    publish("sc1", R2)
    g("s_waitcnt vmcnt(0)")
    g("s_barrier")
    g(f"s_cmp_lg_u32 s{sWave}, 0")
    g("s_cbranch_scc1 L_noatom")
    g("s_mov_b64 exec, 1")
    g(f"v_mov_b32 v{vT0}, 0x1000000")
    g(f"s_lshl_b32 s{sTmp}, s{sGrp}, 2")
    g(f"buffer_atomic_add v{vT0}, v{vZero}, s[{sDv}:{sDv+3}], s{sTmp} offen sc0")
    g("s_waitcnt vmcnt(0)")
    g(f"ds_write_b32 v{vZero}, v{vT0} offset:{LDS_FLAG}")
    g("s_mov_b64 exec, -1")
    g("s_waitcnt lgkmcnt(0)")
    g.lab("L_noatom")
    g("s_barrier")
    g(f"ds_read_b32 v{vT0}, v{vZero} offset:{LDS_FLAG}")
    g("s_waitcnt lgkmcnt(0)")
    g(f"v_readfirstlane_b32 s{sChk}, v{vT0}")
    g("s_nop 3")
    g(f"s_and_b32 s{sTmp}, s{sChk}, 0xffffff")
    g(f"s_cmp_eq_u32 s{sTmp}, s{sExp}")
    g("s_cbranch_scc1 L_round2")
    g(f"s_lshr_b32 s{sTmp}, s{sChk}, 24")
    g(f"s_cmp_lg_u32 s{sTmp}, 3")
    g("s_cbranch_scc1 L_fin")
    round_loads(R2)
    g("s_waitcnt vmcnt(0)")
    g.lab("L_final")
    R = lambda k, r: (vP + r) if k == 0 else (vR + 4 * (k - 1) + r)
    g(f"v_max_f32 v{vMc}, v{R(0,2)}, v{R(1,2)}")
    g(f"v_max3_f32 v{vMc}, v{vMc}, v{R(2,2)}, v{R(3,2)}")
    for k in range(4):
        g(f"v_sub_f32 v{R(k,2)}, v{R(k,2)}, v{vMc}")
    for k in range(4):
        g(f"v_exp_f32 v{R(k,2)}, v{R(k,2)}")
    g("s_nop 0")
    for k in range(4):
        for r in (0, 1, 3):
            g(f"v_mul_f32 v{R(k,r)}, v{R(k,r)}, v{R(k,2)}")
    for r in (3, 0, 1):
        g(f"v_add_f32 v{R(0,r)}, v{R(0,r)}, v{R(1,r)}")
        g(f"v_add_f32 v{R(2,r)}, v{R(2,r)}, v{R(3,r)}")
    for r in (3, 0, 1):
        g(f"v_add_f32 v{R(0,r)}, v{R(0,r)}, v{R(2,r)}")
    g(f"v_rcp_f32 v{vL}, v{R(0,3)}")
    g("s_nop 0")
    g(f"v_mul_f32 v{R(0,0)}, v{R(0,0)}, v{vL}")
    g(f"v_mul_f32 v{R(0,1)}, v{R(0,1)}, v{vL}")
    g(f"v_cvt_pk_bf16_f32 v{R(0,0)}, v{R(0,0)}, v{R(0,1)}")
    g(f"buffer_store_short v{R(0,0)}, v{vOutA}, s[{sOut}:{sOut+3}], 0 offen")
    g(f"buffer_store_short_d16_hi v{R(0,0)}, v{vOutA}, s[{sOut}:{sOut+3}], 0 offen offset:16")
    g.lab("L_fin")
    if stamps:
        g(f"s_memrealtime s[{sT0+6}:{sT0+7}]")
        g(f"s_getreg_b32 s{sT0+8}, hwreg(HW_REG_XCC_ID)")
        g(f"s_mov_b32 s{sT0+9}, s{sOK}")
        g("s_waitcnt lgkmcnt(0)")
        g(f"s_mul_i32 s{sTmp}, s2, {NW}")
        g(f"s_add_u32 s{sTmp}, s{sTmp}, s{sWave}")
        g(f"s_lshl_b32 s{sTmp}, s{sTmp}, 6")
        g(f"s_add_u32 s{sTmp}, s{sTmp}, {STBASE}")
        g("s_mov_b64 exec, 1")
        for j in range(10):
            g(f"v_mov_b32 v{vKV+j}, s{sT0+j}")
        g(f"v_mov_b32 v{vKV+12}, 0")
        g(f"buffer_store_dwordx4 {vr(vKV,4)}, v{vKV+12}, s[{sW}:{sW+3}], s{sTmp} offen")
        g(f"buffer_store_dwordx4 {vr(vKV+4,4)}, v{vKV+12}, s[{sW}:{sW+3}], s{sTmp} offen offset:16")
        g(f"buffer_store_dwordx2 {vr(vKV+8,2)}, v{vKV+12}, s[{sW}:{sW+3}], s{sTmp} offen offset:32")
    g.lab("L_done")
    g("s_endpgm")
    g.lab("L_helper")
    g.c("helper wave: mark this workgroup's partial slot as empty, then count this workgroup (and its XCC) in")
    for r in range(4):
        g(f"v_mov_b32 v{vS+r}, -1")
    g(f"s_cmp_gt_u32 s{sExp}, 7")
    g("s_cbranch_scc1 L_done")
    g(f"s_mul_i32 s{sExp}, s{sExp}, 3")
    g(f"s_lshl_b32 s{sExp}, 1, s{sExp}")
    g(f"s_lshl_b32 s{sTmp}, s{sGrp}, 2")
    g("s_waitcnt lgkmcnt(0)")
    g(f"s_mov_b32 s{sW}, s14")
    g(f"s_mov_b32 s{sW+1}, s15")
    for w in range(2):
        g(f"buffer_store_dwordx4 {vr(vS,4)}, v{vVoff}, s[{sW}:{sW+3}], s{sSl} offen offset:{w*1024}")
    g("s_mov_b64 exec, 0xff")
    g(f"buffer_store_dwordx4 {vr(vS,4)}, v{vVoff}, s[{sW}:{sW+3}], s{sSl} offen offset:2048")
    g(f"s_add_u32 s{sDp}, s12, s{sTmp}")
    g(f"s_addc_u32 s{sDp+1}, s13, 0")
    g("s_waitcnt vmcnt(0)")
    g(f"s_atomic_add s{sExp}, s[{sDp}:{sDp+1}], 0x0")
    g("s_endpgm")
    g.lab("L_codeend")
    g.L.append('.section .rodata,"a"')
    g.L.append(".p2align 6")
    g.L.append(f".amdhsa_kernel {NAME}_kernel")
    g.L.append(f"  .amdhsa_next_free_vgpr {nv}")
    g.L.append(f"  .amdhsa_next_free_sgpr 72")
    g.L.append(f"  .amdhsa_accum_offset {(nv+3)//4*4}")
    g.L.append("  .amdhsa_group_segment_fixed_size 0")
    g.L.append("  .amdhsa_kernarg_size 48")
    g.L.append("  .amdhsa_user_sgpr_count 2")
    g.L.append("  .amdhsa_user_sgpr_kernarg_segment_ptr 1")
    g.L.append("  .amdhsa_system_sgpr_workgroup_id_x 1")
    g.L.append(".end_amdhsa_kernel")
    return g.text()

if __name__ == "__main__":
    ap = argparse.ArgumentParser()
    ap.add_argument("-o", default="cdna_kernels/" + NAME + ".s")
    ap.add_argument("--a", type=int, default=5)
    ap.add_argument("--waits", default=None)
    ap.add_argument("--ld", default="nt")
    ap.add_argument("--stamps", action="store_true")
    ap.add_argument("--noearly", action="store_true")
    ap.add_argument("--forcefb", action="store_true")
    ap.add_argument("--chkit", type=int, default=4)
    ap.add_argument("--cpf", action="store_true")
    a = ap.parse_args()
    w = [int(x) for x in a.waits.split(",")] if a.waits else None
    open(a.o, "w").write(gen(a.a, w, a.ld.replace("_", " ").replace("none", ""), a.stamps, not a.noearly, a.forcefb, a.chkit, a.cpf))
```

```python
import sys, math, argparse
from gen import HDR, NAME, G, vr, f2u

def gen(A=6, waits=(4, 4, 4, 5), ldflags="nt", stamps=False, forcefb=False, chkit=8, tog=0xc000, cpf=False):
    g = G()
    NW = 4; NSPLIT = 4; NG = 64
    NWG = NG * NSPLIT
    T = 32
    GB = 2 << 20
    NT = 320
    LDS_ML = NW * 2048
    LDS_OK = LDS_ML + 4 * NW * 8
    LDS_FLAG = LDS_OK + 16
    LDS = LDS_FLAG + 16
    cscale = (128 ** -0.5) * math.log2(math.e)
    assert all(w <= A - 1 for w in waits) and A <= 12
    R2 = NWG * 4096
    STBASE = 2 * NWG * 4096

    vKoff = 1; vVoff = 2; vM = 3; vMc = 4; vL = 5; vMask0 = 6; vMask1 = 7
    vT0 = 8; vT1 = 9; vA = 10; vMcN = 11
    vQ = 12; vO = 16; vS = 24; vB = 40; vKV = 58
    vR = vS; vP = vS + 12
    e = vKV + 64
    vOo = e; vMo = e + 1; vOutA = e + 2; vLO = e + 3; vLM = e + 4; vLH = e + 5; vLK = e + 6; vZero = e + 7
    nv = e + 8
    def slot(n): return vKV + (n % 16) * 4
    def X(i): return vB + 2 + 4 * i
    S = lambda i, r: vS + 4 * i + r

    sK = 16; sV = 20; sQ = 24; sW = 28; sOut = 32; sDv = 36
    sGrp = 40; sSplit = 41; sWave = 42; sKo = 43; sVo = 44; sC = 45; sIt = 46; sTmp = 47; sTmp2 = 48; sChk = 49
    sT0 = 50
    sDp = 60; sSl = 62; sOK = 67; sExp = 68

    g.L.append(HDR.rstrip())
    if stamps: g.L.append(f"; STAMPBASE {STBASE}")
    g.L.append(f"; @launch grid=({NWG},1,1) block=({NT},1,1) lds={LDS}")
    g.L.append('.amdgcn_target "amdgcn-amd-amdhsa--gfx950"')
    g.L.append(".text")
    g.L.append(f".globl {NAME}_kernel")
    g.L.append(".p2align 8")
    g.L.append(f".type {NAME}_kernel,@function")
    g.lab(f"{NAME}_kernel")
    if stamps:
        g(f"s_memrealtime s[{sT0}:{sT0+1}]")
    g(f"s_cmp_ge_u32 s2, {NWG}")
    g("s_cbranch_scc1 L_done")
    g("s_load_dwordx8 s[4:11], s[0:1], 0            ; q, k, v, out")
    g("s_load_dwordx4 s[12:15], s[0:1], 32")
    if cpf:
        g(f"s_getpc_b64 s[{sDv}:{sDv+1}]")
        g.lab("L_pc")
        g(f"s_sub_u32 s{sDv}, s{sDv}, L_pc-{NAME}_kernel")
        g(f"s_subb_u32 s{sDv+1}, s{sDv+1}, 0")
        g(f"s_mov_b32 s{sDv+2}, L_codeend-{NAME}_kernel")
        g(f"s_mov_b32 s{sDv+3}, 0x20000")
        g(f"v_lshlrev_b32 v{vKoff}, 4, v0")
        g(f"buffer_load_dwordx4 {vr(slot(12),4)}, v{vKoff}, s[{sDv}:{sDv+3}], 0 offen")
    g(f"v_lshrrev_b32 v{vT0}, 6, v0")
    g(f"v_and_b32 v{vVoff}, 63, v0                 ; lane")
    g(f"v_readfirstlane_b32 s{sWave}, v{vT0}")
    g.c("wg = 8*jj + x ; split = jj&3 ; group = x + 8*(jj>>2)  (a group's 4 workgroups usually share an XCD: speed only)")
    g(f"s_and_b32 s{sGrp}, s2, 7")
    g(f"s_lshr_b32 s{sTmp}, s2, 5")
    g(f"s_lshl_b32 s{sTmp}, s{sTmp}, 3")
    g(f"s_add_u32 s{sGrp}, s{sGrp}, s{sTmp}")
    g(f"s_bfe_u32 s{sSplit}, s2, 0x20003")
    g.c("lane l = 16g + 4a + b.  K: key a, bytes 64g+16b of the row.  Q: head b, bytes 64g+16a.  V: linear")
    g(f"v_and_b32 v{vT0}, 3, v{vVoff}")
    g(f"v_bfe_u32 v{vT1}, v{vVoff}, 2, 2")
    g(f"v_lshrrev_b32 v{vA}, 4, v{vVoff}")
    g(f"v_lshlrev_b32 v{vKoff}, 4, v{vT0}")
    g(f"v_lshl_add_u32 v{vKoff}, v{vT1}, 8, v{vKoff}")
    g(f"v_lshl_add_u32 v{vKoff}, v{vA}, 6, v{vKoff}")
    g(f"v_lshlrev_b32 v{vMcN}, 8, v{vT0}")
    g(f"v_lshl_add_u32 v{vMcN}, v{vT1}, 4, v{vMcN}")
    g(f"v_lshl_add_u32 v{vMcN}, v{vA}, 6, v{vMcN}")
    g(f"v_lshlrev_b32 v{vVoff}, 4, v{vVoff}         ; lane*16")
    g(f"s_lshl_b32 s{sKo}, s{sSplit}, 2")
    g(f"s_add_u32 s{sKo}, s{sKo}, s{sWave}")
    g(f"s_lshl_b32 s{sKo}, s{sKo}, 12")
    stride = 16 * 4096
    g(f"s_mov_b32 s{sVo}, s{sKo}")
    g(f"s_lshl_b32 s{sTmp}, s{sGrp}, 21")
    g(f"s_lshl_b32 s{sTmp2}, s{sGrp}, 10")
    for r in (sK, sV, sQ):
        g(f"s_mov_b32 s{r+3}, 0x20000")
    g(f"s_mov_b32 s{sK+2}, {GB}")
    g(f"s_mov_b32 s{sV+2}, {GB}")
    g(f"s_movk_i32 s{sQ+2}, 1024")
    g(f"s_cmp_eq_u32 s{sWave}, 4")
    g("s_cbranch_scc1 L_helper")
    g("s_waitcnt lgkmcnt(0)")
    g(f"s_add_u32 s{sK}, s6, s{sTmp}")
    g(f"s_addc_u32 s{sK+1}, s7, 0")
    g(f"s_add_u32 s{sQ}, s4, s{sTmp2}")
    g(f"s_addc_u32 s{sQ+1}, s5, 0")
    g(f"s_add_u32 s{sV}, s8, s{sTmp}")
    g(f"s_addc_u32 s{sV+1}, s9, 0")
    def issue(n):
        p = n % 8
        if p < 4:
            g(f"buffer_load_dwordx4 {vr(slot(n),4)}, v{vKoff}, s[{sK}:{sK+3}], s{sKo} offen offset:{p*1024} {ldflags}")
            if p == 3:
                g(f"s_add_u32 s{sKo}, s{sKo}, {stride}")
                if tog: g(f"s_xor_b32 s{sKo}, s{sKo}, {tog:#x}")
        else:
            g(f"buffer_load_dwordx4 {vr(slot(n),4)}, v{vVoff}, s[{sV}:{sV+3}], s{sVo} offen offset:{(p-4)*1024} {ldflags}")
            if p == 7:
                g(f"s_add_u32 s{sVo}, s{sVo}, {stride}")
                if tog: g(f"s_xor_b32 s{sVo}, s{sVo}, {tog:#x}")
    g(f"buffer_load_dwordx4 {vr(vQ,4)}, v{vMcN}, s[{sQ}:{sQ+3}], 0 offen")
    for n in range(A):
        issue(n)
    g(f"s_mov_b32 s{sC}, {f2u(cscale):#x}           ; D^-0.5 * log2(e)")
    g(f"v_mov_b32 v{vM}, 0xff800000")
    g(f"v_mov_b32 v{vMc}, v{vM}")
    g(f"v_mov_b32 v{vL}, 0")
    for r in range(8):
        g(f"v_mov_b32 v{vO+r}, 0")
    for r in range(18):
        g(f"v_mov_b32 v{vB+r}, 0")
    for r in range(8):
        g(f"v_mov_b32 v{slot(14)+r}, 0")
    g.c("P placement masks: column group a selects bf16 slot a of the B fragment")
    g(f"v_and_b32 v{vT0}, 1, v{vT1}")
    g(f"v_lshlrev_b32 v{vT0}, 4, v{vT0}")
    g(f"v_mov_b32 v{vA}, 0xffff")
    g(f"v_lshlrev_b32 v{vA}, v{vT0}, v{vA}")
    g(f"v_cmp_gt_u32 vcc, 2, v{vT1}")
    g(f"s_mov_b32 s{sIt}, {T//2}")
    g(f"s_mov_b32 s{sChk}, 0")
    g(f"v_cndmask_b32 v{vMask0}, 0, v{vA}, vcc")
    g(f"v_cndmask_b32 v{vMask1}, v{vA}, 0, vcc")
    if stamps:
        g(f"s_waitcnt vmcnt({A-1})")
        g(f"s_memrealtime s[{sT0+2}:{sT0+3}]")
    def QK(m):
        i = m % 8
        g(f"v_mfma_f32_16x16x32_bf16 {vr(S(i,0),4)}, {vr(slot(m),4)}, {vr(vQ,4)}, 0")
    def PV(mv):
        i = mv % 8 - 4
        g(f"v_mfma_f32_16x16x32_bf16 {vr(vO,4)}, {vr(slot(mv),4)}, {vr(X(i),4)}, {vr(vO,4)}")
        g(f"v_mfma_f32_16x16x32_bf16 {vr(vO+4,4)}, {vr(slot(mv),4)}, {vr(X(i)-2,4)}, {vr(vO+4,4)}")
    def SMA(nop=3):
        g(f"s_nop {nop}")
        for i in range(4):
            g(f"v_add_f32_dpp v{S(i,1)}, v{S(i,2)}, v{S(i,0)} row_ror:8 row_mask:0xf bank_mask:0x1")
        for i in range(4):
            g(f"v_add_f32_dpp v{S(i,1)}, v{S(i,0)}, v{S(i,2)} row_ror:8 row_mask:0xf bank_mask:0x4")
        for i in range(4):
            g(f"v_add_f32_dpp v{S(i,1)}, v{S(i,1)}, v{S(i,3)} row_ror:8 row_mask:0xf bank_mask:0x8")
        for i in range(4):
            g(f"v_add_f32_dpp v{S(i,1)}, v{S(i,3)}, v{S(i,1)} row_ror:8 row_mask:0xf bank_mask:0x2")
        for i in range(4):
            g(f"v_add_f32_dpp v{S(i,0)}, v{S(i,1)}, v{S(i,1)} row_ror:4 row_mask:0xf bank_mask:0xf")
    def SMB():
        g(f"v_max3_f32 v{vT0}, v{S(0,0)}, v{S(1,0)}, v{S(2,0)}")
        g(f"v_max3_f32 v{vT0}, v{vT0}, v{S(3,0)}, v{vM}")
        g(f"v_mov_b32 v{vT1}, v{vT0}")
        g("s_nop 1")
        g(f"v_permlane32_swap_b32 v{vT0}, v{vT1}")
        g("s_nop 1")
        g(f"v_max_f32 v{vT0}, v{vT0}, v{vT1}")
        g(f"v_mov_b32 v{vT1}, v{vT0}")
        g("s_nop 1")
        g(f"v_permlane16_swap_b32 v{vT0}, v{vT1}")
        g("s_nop 1")
        g(f"v_max_f32 v{vM}, v{vT0}, v{vT1}")
        g(f"v_mul_f32 v{vMcN}, s{sC}, v{vM}")
        g(f"v_sub_f32 v{vA}, v{vMc}, v{vMcN}")
        g(f"v_exp_f32 v{vA}, v{vA}")
        for i in range(4):
            g(f"v_fma_f32 v{S(i,0)}, v{S(i,0)}, s{sC}, -v{vMcN}")
        for i in range(4):
            g(f"v_exp_f32 v{S(i,0)}, v{S(i,0)}")
        g(f"v_mov_b32 v{vMc}, v{vMcN}")
    def SMC():
        for r in range(8):
            g(f"v_mul_f32 v{vO+r}, v{vO+r}, v{vA}")
        for i in range(4):
            g(f"v_cvt_pk_bf16_f32 v{S(i,1)}, v{S(i,0)}, v{S(i,0)}")
        for i in range(4):
            g(f"v_and_b32 v{X(i)}, v{S(i,1)}, v{vMask0}")
            g(f"v_and_b32 v{X(i)+1}, v{S(i,1)}, v{vMask1}")
        g(f"v_fma_f32 v{vL}, v{vL}, v{vA}, v{S(0,0)}")
        g(f"v_add_f32 v{S(1,0)}, v{S(1,0)}, v{S(2,0)}")
        g(f"v_add_f32 v{vL}, v{vL}, v{S(3,0)}")
        g(f"v_add_f32 v{vL}, v{vL}, v{S(1,0)}")
    def compute(m):
        p = m % 8
        if p < 4: QK(m)
        if p in (0, 1): PV(m - 2 + 16)
        if p == 4: SMA()
        if p == 5: SMB()
        if p == 6: SMC(); PV(m - 2)
        if p == 7: PV(m - 2)
    g.lab("L_loop")
    for m in range(16):
        g(f"s_waitcnt vmcnt({waits[m % len(waits)]})")
        issue(m + A)
        compute(m)
    g(f"s_sub_u32 s{sIt}, s{sIt}, 1")
    g(f"s_cmp_lg_u32 s{sIt}, 1")
    g("s_cbranch_scc1 L_loop")
    g.c("last two tiles: every remaining load goes out as soon as its registers are free")
    issued = A
    for n in range(A, 14):
        issue(n); issued = n + 1
    g.c("everything the tail needs (all loads are in flight meanwhile)")
    g(f"s_lshl_b32 s{sTmp}, s{sGrp}, 2")
    g(f"s_add_u32 s{sDp}, s12, s{sTmp}")
    g(f"s_addc_u32 s{sDp+1}, s13, 0")
    if chkit == 8:
        g(f"s_load_dword s{sChk}, s[{sDp}:{sDp+1}], 0x0")
    g(f"s_mov_b32 s{sW}, s14")
    g(f"s_mov_b32 s{sW+1}, s15")
    g(f"s_mov_b32 s{sW+2}, {STBASE + (NWG*NW*64 if stamps else 0)}")
    g(f"s_mov_b32 s{sW+3}, 0x20000")
    g(f"s_add_u32 s{sOut}, s10, s{sTmp2}")
    g(f"s_addc_u32 s{sOut+1}, s11, 0")
    g(f"s_movk_i32 s{sOut+2}, 1024")
    g(f"s_mov_b32 s{sOut+3}, 0x20000")
    g(f"s_mov_b32 s{sDv}, s12")
    g(f"s_mov_b32 s{sDv+1}, s13")
    g(f"s_movk_i32 s{sDv+2}, 256")
    g(f"s_mov_b32 s{sDv+3}, 0x20000")
    g(f"s_lshl_b32 s{sSl}, s2, 12")
    for k in (1, 2, 3):
        g(f"s_xor_b32 s{sSl+k}, s{sSl}, {k*8*4096}")
    g.c("counter word expected when all four workgroups checked in from THIS XCC: 4 << (3*xcc); ids > 7 never match")
    g(f"s_getreg_b32 s{sExp}, hwreg(HW_REG_XCC_ID, 0, 4)")
    g(f"s_mul_i32 s{sTmp}, s{sExp}, 3")
    g(f"s_lshl_b32 s{sTmp}, 4, s{sTmp}")
    g(f"s_cmp_gt_u32 s{sExp}, 7")
    g(f"s_cselect_b32 s{sExp}, -1, s{sTmp}")
    if forcefb:
        g(f"s_mov_b32 s{sExp}, -1")
    g(f"v_lshlrev_b32 v{vOo}, 3, v0")
    g(f"v_bfe_u32 v{vLH}, v0, 1, 2")
    g(f"s_lshl_b32 s{sTmp}, s{sWave}, 5")
    g(f"v_lshl_add_u32 v{vMo}, v{vLH}, 3, s{sTmp}")
    g(f"v_lshlrev_b32 v{vOutA}, 8, v{vLH}")
    g(f"v_lshlrev_b32 v{vLH}, 5, v{vLH}")
    g(f"v_bfe_u32 v{vZero}, v0, 5, 2")
    g(f"v_lshl_add_u32 v{vOutA}, v{vZero}, 6, v{vOutA}")
    g(f"v_and_b32 v{vZero}, 1, v0")
    g(f"v_lshl_add_u32 v{vOutA}, v{vZero}, 5, v{vOutA}")
    g(f"v_bfe_u32 v{vZero}, v0, 7, 1")
    g(f"v_lshl_add_u32 v{vOutA}, v{vZero}, 3, v{vOutA}")
    g(f"v_bfe_u32 v{vZero}, v0, 3, 2")
    g(f"v_lshl_add_u32 v{vOutA}, v{vZero}, 1, v{vOutA}")
    g(f"v_mov_b32 v{vZero}, 0")
    g(f"s_lshl_b32 s{sTmp}, s{sWave}, 11")
    g(f"v_add_u32 v{vLO}, s{sTmp}, v{vVoff}")
    g(f"s_lshl_b32 s{sTmp}, s{sWave}, 3")
    g(f"v_lshl_add_u32 v{vLM}, v{vVoff}, 1, s{sTmp}")
    g(f"s_lshl_b32 s{sTmp}, s{sWave}, 2")
    g(f"v_mov_b32 v{vLK}, s{sTmp}")
    def w(m): g(f"s_waitcnt vmcnt({issued - 1 - m})")
    for m in (0, 1):
        w(m); QK(m); PV(m + 14); issue(14 + m); issued = 15 + m
    for m in (2, 3):
        w(m); QK(m)
    SMA(4); SMB(); SMC()
    for m in (4, 5, 6, 7):
        w(m); PV(m)
    for m in (8, 9, 10, 11):
        w(m); QK(m)
    SMA(4); SMB(); SMC()
    g.c("row sums across the four key groups; publish (max, sum) and this wave's view of the counter to LDS")
    g(f"v_mov_b32 v{vT1}, v{vL}")
    g("s_waitcnt lgkmcnt(0)")
    g(f"s_and_b32 s{sChk}, s{sChk}, 0xffffff")
    g(f"v_permlane32_swap_b32 v{vL}, v{vT1}")
    g(f"s_cmp_eq_u32 s{sChk}, s{sExp}")
    g(f"s_cselect_b32 s{sOK}, 1, 0")
    g(f"v_add_f32 v{vL}, v{vL}, v{vT1}")
    g(f"v_mov_b32 v{vT1}, v{vL}")
    g(f"v_mov_b32 v{vM}, s{sOK}")
    g("s_nop 0")
    g(f"v_permlane16_swap_b32 v{vL}, v{vT1}")
    g("s_nop 1")
    g(f"v_add_f32 v{vL}, v{vL}, v{vT1}")
    g("s_mov_b64 exec, 0xf")
    g(f"ds_write_b64 v{vLM}, {vr(vMc,2)} offset:{LDS_ML}")
    g(f"ds_write_b32 v{vLK}, v{vM} offset:{LDS_OK}")
    g("s_mov_b64 exec, -1")
    g("s_nop 3")
    for m in (12, 13, 14, 15):
        w(m); PV(m)
    if stamps:
        g(f"s_memrealtime s[{sT0+4}:{sT0+5}]")
    def round_loads(extra=0):
        for k in (1, 2, 3):
            so = f"s{sSl+k}"
            if extra:
                g(f"s_add_u32 s{sTmp}, s{sSl+k}, {extra}"); so = f"s{sTmp}"
            g(f"buffer_load_dwordx2 {vr(vR+4*(k-1),2)}, v{vOo}, s[{sW}:{sW+3}], {so} offen sc1")
            g(f"buffer_load_dwordx2 {vr(vR+4*(k-1)+2,2)}, v{vMo}, s[{sW}:{sW+3}], {so} offen offset:2048 sc1")
    def publish(flags="", extra=0):
        so = f"s{sSl}"
        if extra:
            g(f"s_add_u32 s{sTmp}, s{sSl}, {extra}"); so = f"s{sTmp}"
        g(f"buffer_store_dwordx2 {vr(vP,2)}, v{vOo}, s[{sW}:{sW+3}], {so} offen {flags}")
        g("s_mov_b64 exec, 0x55")
        g(f"buffer_store_dwordx2 {vr(vP+2,2)}, v{vMo}, s[{sW}:{sW+3}], {so} offen offset:2048 {flags}")
        g("s_mov_b64 exec, -1")
    def round_check(target_ok):
        g(f"v_max3_u32 v{vT0}, v{vR}, v{vR+1}, v{vR+2}")
        g(f"v_max3_u32 v{vT1}, v{vR+3}, v{vR+4}, v{vR+5}")
        g(f"v_max3_u32 v{vT0}, v{vT0}, v{vR+6}, v{vR+7}")
        g(f"v_max3_u32 v{vT1}, v{vT1}, v{vR+8}, v{vR+9}")
        g(f"v_max3_u32 v{vT0}, v{vT0}, v{vR+10}, v{vR+11}")
        g(f"v_max_u32 v{vT0}, v{vT0}, v{vT1}")
        g(f"v_cmp_eq_u32 vcc, -1, v{vT0}")
        g(f"s_cbranch_vccz {target_ok}")
    g(f"s_cmp_eq_u32 s{sOK}, 0")
    g("s_cbranch_scc1 L_noearly")
    g.c("early look at the other three partials (valid: all four slots were marked empty before)")
    round_loads()
    g("s_branch L_wr")
    g.lab("L_noearly")
    g("s_nop 7")
    g.lab("L_wr")
    g(f"ds_write_b128 v{vLO}, {vr(vO,4)}")
    g(f"ds_write_b128 v{vLO}, {vr(vO+4,4)} offset:1024")
    vML = vB; vOw = vB + 8; vOKs = vQ
    g("s_waitcnt lgkmcnt(0)")
    g("s_barrier")
    g(f"ds_read_b128 {vr(vML,4)}, v{vLH} offset:{LDS_ML}")
    g(f"ds_read_b128 {vr(vML+4,4)}, v{vLH} offset:{LDS_ML+16}")
    g(f"ds_read_b128 {vr(vOKs,4)}, v{vZero} offset:{LDS_OK}")
    for wv in range(NW):
        g(f"ds_read_b64 {vr(vOw+2*wv,2)}, v{vOo} offset:{wv*2048}")
    g(f"s_mov_b32 s{sTmp}, 0xfffffffe")
    g("s_waitcnt lgkmcnt(4)")
    g(f"v_max_f32 v{vP+2}, v{vML}, v{vML+2}")
    g(f"v_and_b32 v{vOKs}, v{vOKs}, v{vOKs+1}")
    g(f"v_max3_f32 v{vP+2}, v{vP+2}, v{vML+4}, v{vML+6}")
    g(f"v_and_b32 v{vOKs+2}, v{vOKs+2}, v{vOKs+3}")
    for wv in range(NW):
        g(f"v_sub_f32 v{vML+2*wv}, v{vML+2*wv}, v{vP+2}")
    g(f"v_and_b32 v{vOKs}, v{vOKs}, v{vOKs+2}")
    for wv in range(NW):
        g(f"v_exp_f32 v{vML+2*wv}, v{vML+2*wv}")
    g(f"v_readfirstlane_b32 s{sOK}, v{vOKs}")
    g(f"v_mul_f32 v{vP+3}, v{vML}, v{vML+1}")
    for wv in range(1, NW):
        g(f"v_fmac_f32 v{vP+3}, v{vML+2*wv}, v{vML+2*wv+1}")
    g("s_waitcnt lgkmcnt(0)")
    g(f"v_mul_f32 v{vP}, v{vML}, v{vOw}")
    g(f"v_mul_f32 v{vP+1}, v{vML}, v{vOw+1}")
    for wv in range(1, NW):
        g(f"v_fmac_f32 v{vP}, v{vML+2*wv}, v{vOw+2*wv}")
        g(f"v_fmac_f32 v{vP+1}, v{vML+2*wv}, v{vOw+2*wv+1}")
    for r in (2, 3, 0, 1):
        g(f"v_min_u32 v{vP+r}, s{sTmp}, v{vP+r}")
    g(f"s_cmp_eq_u32 s{sOK}, 0")
    g("s_cbranch_scc1 L_slow")
    g("s_waitcnt vmcnt(0)")
    round_check("L_final")
    publish()
    round_loads()
    g("s_waitcnt vmcnt(0)")
    round_check("L_final")
    g.lab("L_round2")
    g.c("own partial is visible now: if another one is still missing, its owner will see ours and finish the job")
    round_loads()
    g("s_waitcnt vmcnt(0)")
    round_check("L_final")
    g("s_branch L_fin")
    g.lab("L_slow")
    g.c("placement unknown or different XCCs: publish in both regions, then one returning atomic decides")
    publish()
    publish("sc1", R2)
    g("s_waitcnt vmcnt(0)")
    g("s_barrier")
    g(f"s_cmp_lg_u32 s{sWave}, 0")
    g("s_cbranch_scc1 L_noatom")
    g("s_mov_b64 exec, 1")
    g(f"v_mov_b32 v{vT0}, 0x1000000")
    g(f"s_lshl_b32 s{sTmp}, s{sGrp}, 2")
    g(f"buffer_atomic_add v{vT0}, v{vZero}, s[{sDv}:{sDv+3}], s{sTmp} offen sc0")
    g("s_waitcnt vmcnt(0)")
    g(f"ds_write_b32 v{vZero}, v{vT0} offset:{LDS_FLAG}")
    g("s_mov_b64 exec, -1")
    g("s_waitcnt lgkmcnt(0)")
    g.lab("L_noatom")
    g("s_barrier")
    g(f"ds_read_b32 v{vT0}, v{vZero} offset:{LDS_FLAG}")
    g("s_waitcnt lgkmcnt(0)")
    g(f"v_readfirstlane_b32 s{sChk}, v{vT0}")
    g("s_nop 3")
    g(f"s_and_b32 s{sTmp}, s{sChk}, 0xffffff")
    g(f"s_cmp_eq_u32 s{sTmp}, s{sExp}")
    g("s_cbranch_scc1 L_round2")
    g(f"s_lshr_b32 s{sTmp}, s{sChk}, 24")
    g(f"s_cmp_lg_u32 s{sTmp}, 3")
    g("s_cbranch_scc1 L_fin")
    round_loads(R2)
    g("s_waitcnt vmcnt(0)")
    g.lab("L_final")
    R = lambda k, r: (vP + r) if k == 0 else (vR + 4 * (k - 1) + r)
    g(f"v_max_f32 v{vMc}, v{R(0,2)}, v{R(1,2)}")
    g(f"v_max3_f32 v{vMc}, v{vMc}, v{R(2,2)}, v{R(3,2)}")
    for k in range(4):
        g(f"v_sub_f32 v{R(k,2)}, v{R(k,2)}, v{vMc}")
    for k in range(4):
        g(f"v_exp_f32 v{R(k,2)}, v{R(k,2)}")
    g("s_nop 0")
    for r in (3, 0, 1):
        for k in range(4):
            g(f"v_mul_f32 v{R(k,r)}, v{R(k,r)}, v{R(k,2)}")
    for r in (3, 0, 1):
        g(f"v_add_f32 v{R(0,r)}, v{R(0,r)}, v{R(1,r)}")
        g(f"v_add_f32 v{R(2,r)}, v{R(2,r)}, v{R(3,r)}")
    g(f"v_add_f32 v{R(0,3)}, v{R(0,3)}, v{R(2,3)}")
    g(f"v_rcp_f32 v{vL}, v{R(0,3)}")
    g(f"v_add_f32 v{R(0,0)}, v{R(0,0)}, v{R(2,0)}")
    g(f"v_add_f32 v{R(0,1)}, v{R(0,1)}, v{R(2,1)}")
    g(f"v_mul_f32 v{R(0,0)}, v{R(0,0)}, v{vL}")
    g(f"v_mul_f32 v{R(0,1)}, v{R(0,1)}, v{vL}")
    g(f"v_cvt_pk_bf16_f32 v{R(0,0)}, v{R(0,0)}, v{R(0,1)}")
    g(f"buffer_store_short v{R(0,0)}, v{vOutA}, s[{sOut}:{sOut+3}], 0 offen")
    g(f"buffer_store_short_d16_hi v{R(0,0)}, v{vOutA}, s[{sOut}:{sOut+3}], 0 offen offset:16")
    g.lab("L_fin")
    if stamps:
        g(f"s_memrealtime s[{sT0+6}:{sT0+7}]")
        g(f"s_getreg_b32 s{sT0+8}, hwreg(HW_REG_XCC_ID)")
        g(f"s_mov_b32 s{sT0+9}, s{sOK}")
        g("s_waitcnt lgkmcnt(0)")
        g(f"s_mul_i32 s{sTmp}, s2, {NW}")
        g(f"s_add_u32 s{sTmp}, s{sTmp}, s{sWave}")
        g(f"s_lshl_b32 s{sTmp}, s{sTmp}, 6")
        g(f"s_add_u32 s{sTmp}, s{sTmp}, {STBASE}")
        g("s_mov_b64 exec, 1")
        for j in range(10):
            g(f"v_mov_b32 v{vKV+j}, s{sT0+j}")
        g(f"v_mov_b32 v{vKV+12}, 0")
        g(f"buffer_store_dwordx4 {vr(vKV,4)}, v{vKV+12}, s[{sW}:{sW+3}], s{sTmp} offen")
        g(f"buffer_store_dwordx4 {vr(vKV+4,4)}, v{vKV+12}, s[{sW}:{sW+3}], s{sTmp} offen offset:16")
        g(f"buffer_store_dwordx2 {vr(vKV+8,2)}, v{vKV+12}, s[{sW}:{sW+3}], s{sTmp} offen offset:32")
    g.lab("L_done")
    g("s_endpgm")
    g.lab("L_helper")
    g.c("helper wave: mark this workgroup's partial slot as empty, then count this workgroup (and its XCC) in")
    g(f"s_getreg_b32 s{sExp}, hwreg(HW_REG_XCC_ID, 0, 4)")
    for r in range(4):
        g(f"v_mov_b32 v{vS+r}, -1")
    g(f"s_cmp_gt_u32 s{sExp}, 7")
    g("s_cbranch_scc1 L_done")
    g(f"s_mul_i32 s{sExp}, s{sExp}, 3")
    g(f"s_lshl_b32 s{sExp}, 1, s{sExp}")
    g(f"s_lshl_b32 s{sTmp}, s{sGrp}, 2")
    g(f"s_lshl_b32 s{sSl}, s2, 12")
    g(f"s_mov_b32 s{sW+2}, {STBASE}")
    g(f"s_mov_b32 s{sW+3}, 0x20000")
    g("s_waitcnt lgkmcnt(0)")
    g(f"s_mov_b32 s{sW}, s14")
    g(f"s_mov_b32 s{sW+1}, s15")
    for wv in range(2):
        g(f"buffer_store_dwordx4 {vr(vS,4)}, v{vVoff}, s[{sW}:{sW+3}], s{sSl} offen offset:{wv*1024}")
    g("s_mov_b64 exec, 0xff")
    g(f"buffer_store_dwordx4 {vr(vS,4)}, v{vVoff}, s[{sW}:{sW+3}], s{sSl} offen offset:2048")
    g(f"s_add_u32 s{sDp}, s12, s{sTmp}")
    g(f"s_addc_u32 s{sDp+1}, s13, 0")
    g("s_waitcnt vmcnt(0)")
    g(f"s_atomic_add s{sExp}, s[{sDp}:{sDp+1}], 0x0")
    g("s_endpgm")
    g.lab("L_codeend")
    g.L.append('.section .rodata,"a"')
    g.L.append(".p2align 6")
    g.L.append(f".amdhsa_kernel {NAME}_kernel")
    g.L.append(f"  .amdhsa_next_free_vgpr {nv}")
    g.L.append(f"  .amdhsa_next_free_sgpr 72")
    g.L.append(f"  .amdhsa_accum_offset {(nv+3)//4*4}")
    g.L.append("  .amdhsa_group_segment_fixed_size 0")
    g.L.append("  .amdhsa_kernarg_size 48")
    g.L.append("  .amdhsa_user_sgpr_count 2")
    g.L.append("  .amdhsa_user_sgpr_kernarg_segment_ptr 1")
    g.L.append("  .amdhsa_system_sgpr_workgroup_id_x 1")
    g.L.append(".end_amdhsa_kernel")
    return g.text()

if __name__ == "__main__":
    ap = argparse.ArgumentParser()
    ap.add_argument("-o", default="cdna_kernels/" + NAME + ".s")
    ap.add_argument("--a", type=int, default=6)
    ap.add_argument("--waits", default="4,4,4,5")
    ap.add_argument("--ld", default="nt")
    ap.add_argument("--stamps", action="store_true")
    ap.add_argument("--forcefb", action="store_true")
    ap.add_argument("--chkit", type=int, default=8)
    ap.add_argument("--tog", type=lambda x: int(x, 0), default=0xc000)
    ap.add_argument("--cpf", action="store_true")
    a = ap.parse_args()
    w = [int(x) for x in a.waits.split(",")]
    open(a.o, "w").write(gen(a.a, w, a.ld.replace("_", " ").replace("none", ""), a.stamps, a.forcefb, a.chkit, a.tog, a.cpf))
```

```python
import sys, math, argparse
from gen import HDR, NAME, G, vr, f2u

def gen(A=6, waits=(4, 4, 4, 5), ldflags="nt", stamps=False, forcefb=False, chkit=8, tog=0xc000, cpf=False, warm=0, flat=False, noimm=False):
    g = G()
    NW = 4; NSPLIT = 4; NG = 64
    NWG = NG * NSPLIT
    T = 32
    GB = 2 << 20
    NT = 320
    LDS_ML = NW * 2048
    LDS_OK = LDS_ML + 4 * NW * 8
    LDS_FLAG = LDS_OK + 16
    LDS = LDS_FLAG + 16
    cscale = (128 ** -0.5) * math.log2(math.e)
    assert all(w <= A - 1 for w in waits) and A <= 12
    R2 = NWG * 4096
    STBASE = 2 * NWG * 4096

    vKoff = 1; vVoff = 2; vM = 3; vMc = 4; vL = 5; vMask0 = 6; vMask1 = 7
    vT0 = 8; vT1 = 9; vA = 10; vMcN = 11
    vQ = 12; vO = 16; vS = 24; vB = 40; vKV = 58
    vR = vS; vP = vS + 12
    e = vKV + 64
    vOo = e; vMo = e + 1; vOutA = e + 2; vLO = e + 3; vLM = e + 4; vLH = e + 5; vLK = e + 6; vZero = e + 7; vLane16 = e + 8
    nv = e + 9
    def slot(n): return vKV + (n % 16) * 4
    def X(i): return vB + 2 + 4 * i
    S = lambda i, r: vS + 4 * i + r

    sK = 16; sV = 20; sQ = 24; sW = 28; sOut = 32; sDv = 36
    sGrp = 40; sSplit = 41; sWave = 42; sKo = 43; sVo = 44; sC = 45; sIt = 46; sTmp = 47; sTmp2 = 48; sChk = 49
    sT0 = 50
    sDp = 60; sSl = 62; sOK = 67; sExp = 68; sCp = 4

    g.L.append(HDR.rstrip())
    if stamps: g.L.append(f"; STAMPBASE {STBASE}")
    g.L.append(f"; @launch grid=({NWG},1,1) block=({NT},1,1) lds={LDS}")
    g.L.append('.amdgcn_target "amdgcn-amd-amdhsa--gfx950"')
    g.L.append(".text")
    g.L.append(f".globl {NAME}_kernel")
    g.L.append(".p2align 8")
    g.L.append(f".type {NAME}_kernel,@function")
    g.lab(f"{NAME}_kernel")
    if stamps:
        g(f"s_memrealtime s[{sT0}:{sT0+1}]")
    g(f"s_cmpk_ge_u32 s2, {NWG}")
    g("s_cbranch_scc1 L_done")
    g(f"s_load_dwordx2 s[{sK}:{sK+1}], s[0:1], 8")
    g(f"s_load_dwordx2 s[{sV}:{sV+1}], s[0:1], 16")
    g(f"s_load_dwordx2 s[{sQ}:{sQ+1}], s[0:1], 0")
    g.c("wg = 8*jj + x ; split = jj&3 ; group = x + 8*(jj>>2)  (a group's 4 workgroups usually share an XCD: speed only)")
    g.c("byte offset of the first tile: group*2MiB + (4*split + wave)*4KiB  (tile = 16 keys; wave part lives in the VGPR offset)")
    g(f"s_and_b32 s{sGrp}, s2, 7")
    g(f"s_lshr_b32 s{sTmp}, s2, 5")
    g(f"s_lshl3_add_u32 s{sGrp}, s{sTmp}, s{sGrp}")
    g(f"s_and_b32 s{sTmp}, s2, 24")
    g(f"s_lshl_b32 s{sKo}, s{sGrp}, 21")
    g(f"s_lshl_b32 s{sTmp}, s{sTmp}, 11")
    g(f"s_or_b32 s{sKo}, s{sKo}, s{sTmp}")
    g(f"s_brev_b32 s{sK+2}, 16                     ; 128 MiB")
    g(f"s_lshl_b32 s{sK+3}, 1, 17                  ; 0x20000")
    g.c("lane l = 16g + 4a + b.  K: key a, bytes 64g+16b of the row.  Q: head b, bytes 64g+16a.  V: linear")
    g(f"v_readfirstlane_b32 s{sWave}, v0")
    g(f"v_and_b32 v{vT0}, 3, v0")
    g(f"v_and_b32 v{vT1}, 0xcc, v0")
    g(f"v_and_b32 v{vA}, 48, v0")
    g(f"v_lshlrev_b32 v{vKoff}, 4, v{vT0}")
    g(f"v_lshl_or_b32 v{vKoff}, v{vT1}, 6, v{vKoff}")
    g(f"v_lshl_or_b32 v{vKoff}, v{vA}, 2, v{vKoff}")
    g(f"s_cmpk_ge_u32 s{sWave}, 256")
    g("s_cbranch_scc1 L_helper")
    stride = 16 * 4096
    def issue(n):
        p = n % 8
        so, vo, srd = (sKo, vKoff, sK) if p < 4 else (sVo, vVoff, sV)
        g(f"buffer_load_dwordx4 {vr(slot(n),4)}, v{vo}, s[{srd}:{srd+3}], s{so} offen {ldflags}")
        if p % 4 == 3:
            g(f"s_add_u32 s{so}, s{so}, {stride-3072}")
            if tog: g(f"s_xor_b32 s{so}, s{so}, {tog:#x}")
        else:
            g(f"s_addk_i32 s{so}, 1024")
    g("s_waitcnt lgkmcnt(0)")
    g(f"buffer_load_dwordx4 {vr(slot(0),4)}, v{vKoff}, s[{sK}:{sK+3}], s{sKo} offen {ldflags}")
    g(f"s_mov_b32 s{sVo}, s{sKo}")
    g(f"s_addk_i32 s{sKo}, 1024")
    g(f"s_lshr_b32 s{sWave}, s{sWave}, 6")
    g(f"v_bfe_u32 v{vT1}, v0, 2, 2")
    g(f"v_lshlrev_b32 v{vMcN}, 8, v{vT0}")
    g(f"v_lshl_or_b32 v{vMcN}, v{vT1}, 4, v{vMcN}")
    g(f"v_lshl_or_b32 v{vMcN}, v{vA}, 2, v{vMcN}")
    g(f"s_lshl_b32 s{sTmp2}, s{sGrp}, 10")
    g(f"s_mov_b32 s{sQ+2}, 0x10000")
    g(f"s_mov_b32 s{sQ+3}, s{sK+3}")
    g(f"buffer_load_dwordx4 {vr(vQ,4)}, v{vMcN}, s[{sQ}:{sQ+3}], s{sTmp2} offen")
    g(f"v_and_b32 v{vLane16}, 63, v0")
    issue(1)
    g(f"v_and_b32 v{vVoff}, 0xc0, v0")
    issue(2)
    g(f"v_lshlrev_b32 v{vLane16}, 4, v{vLane16}       ; lane*16")
    issue(3)
    g(f"v_lshl_or_b32 v{vVoff}, v{vVoff}, 6, v{vLane16}")
    g(f"s_mov_b32 s{sV+2}, s{sK+2}")
    g(f"s_mov_b32 s{sV+3}, s{sK+3}")
    for n in range(4, A):
        issue(n)
    g("s_load_dwordx2 s[10:11], s[0:1], 24          ; out")
    g("s_load_dwordx4 s[12:15], s[0:1], 32")
    if cpf:
        g.c("pull this kernel's own code into L2 early")
        g(f"s_getpc_b64 s[{sCp}:{sCp+1}]")
        g.lab("L_pc")
        g(f"s_sub_u32 s{sCp}, s{sCp}, L_pc-{NAME}_kernel")
        g(f"s_subb_u32 s{sCp+1}, s{sCp+1}, 0")
        g(f"s_mov_b32 s{sCp+2}, L_codeend-{NAME}_kernel")
        g(f"s_mov_b32 s{sCp+3}, 0x20000")
        g(f"v_lshlrev_b32 v{vM}, 4, v0")
        g(f"buffer_load_dwordx4 {vr(slot(12),4)}, v{vM}, s[{sCp}:{sCp+3}], 0 offen")
    g(f"s_mov_b32 s{sC}, {f2u(cscale):#x}           ; D^-0.5 * log2(e)")
    g(f"v_mov_b32 v{vM}, 0xff800000")
    g(f"v_mov_b32 v{vMc}, v{vM}")
    g(f"v_mov_b32 v{vL}, 0")
    for r in range(8):
        g(f"v_mov_b32 v{vO+r}, 0")
    for r in range(18):
        g(f"v_mov_b32 v{vB+r}, 0")
    for r in range(8):
        g(f"v_mov_b32 v{slot(14)+r}, 0")
    g.c("P placement masks: column group a selects bf16 slot a of the B fragment")
    g(f"v_and_b32 v{vT0}, 1, v{vT1}")
    g(f"v_lshlrev_b32 v{vT0}, 4, v{vT0}")
    g(f"v_mov_b32 v{vA}, 0xffff")
    g(f"v_lshlrev_b32 v{vA}, v{vT0}, v{vA}")
    g(f"v_cmp_gt_u32 vcc, 2, v{vT1}")
    g(f"s_mov_b32 s{sIt}, {T//2}")
    g(f"s_mov_b32 s{sChk}, 0")
    g(f"v_cndmask_b32 v{vMask0}, 0, v{vA}, vcc")
    g(f"v_cndmask_b32 v{vMask1}, v{vA}, 0, vcc")
    if stamps:
        g(f"s_waitcnt vmcnt({A-1})")
        g(f"s_memrealtime s[{sT0+2}:{sT0+3}]")
    def QK(m):
        i = m % 8
        g(f"v_mfma_f32_16x16x32_bf16 {vr(S(i,0),4)}, {vr(slot(m),4)}, {vr(vQ,4)}, 0")
    def PV(mv):
        i = mv % 8 - 4
        g(f"v_mfma_f32_16x16x32_bf16 {vr(vO,4)}, {vr(slot(mv),4)}, {vr(X(i),4)}, {vr(vO,4)}")
        g(f"v_mfma_f32_16x16x32_bf16 {vr(vO+4,4)}, {vr(slot(mv),4)}, {vr(X(i)-2,4)}, {vr(vO+4,4)}")
    def SMA(nop=3):
        g(f"s_nop {nop}")
        for i in range(4):
            g(f"v_add_f32_dpp v{S(i,1)}, v{S(i,2)}, v{S(i,0)} row_ror:8 row_mask:0xf bank_mask:0x1")
        for i in range(4):
            g(f"v_add_f32_dpp v{S(i,1)}, v{S(i,0)}, v{S(i,2)} row_ror:8 row_mask:0xf bank_mask:0x4")
        for i in range(4):
            g(f"v_add_f32_dpp v{S(i,1)}, v{S(i,1)}, v{S(i,3)} row_ror:8 row_mask:0xf bank_mask:0x8")
        for i in range(4):
            g(f"v_add_f32_dpp v{S(i,1)}, v{S(i,3)}, v{S(i,1)} row_ror:8 row_mask:0xf bank_mask:0x2")
        for i in range(4):
            g(f"v_add_f32_dpp v{S(i,0)}, v{S(i,1)}, v{S(i,1)} row_ror:4 row_mask:0xf bank_mask:0xf")
    def SMB():
        g(f"v_max3_f32 v{vT0}, v{S(0,0)}, v{S(1,0)}, v{S(2,0)}")
        g(f"v_max3_f32 v{vT0}, v{vT0}, v{S(3,0)}, v{vM}")
        g(f"v_mov_b32 v{vT1}, v{vT0}")
        g("s_nop 1")
        g(f"v_permlane32_swap_b32 v{vT0}, v{vT1}")
        g("s_nop 1")
        g(f"v_max_f32 v{vT0}, v{vT0}, v{vT1}")
        g(f"v_mov_b32 v{vT1}, v{vT0}")
        g("s_nop 1")
        g(f"v_permlane16_swap_b32 v{vT0}, v{vT1}")
        g("s_nop 1")
        g(f"v_max_f32 v{vM}, v{vT0}, v{vT1}")
        g(f"v_mul_f32 v{vMcN}, s{sC}, v{vM}")
        g(f"v_sub_f32 v{vA}, v{vMc}, v{vMcN}")
        g(f"v_exp_f32 v{vA}, v{vA}")
        for i in range(4):
            g(f"v_fma_f32 v{S(i,0)}, v{S(i,0)}, s{sC}, -v{vMcN}")
        for i in range(4):
            g(f"v_exp_f32 v{S(i,0)}, v{S(i,0)}")
        g(f"v_mov_b32 v{vMc}, v{vMcN}")
    def SMC():
        for r in range(8):
            g(f"v_mul_f32 v{vO+r}, v{vO+r}, v{vA}")
        for i in range(4):
            g(f"v_cvt_pk_bf16_f32 v{S(i,1)}, v{S(i,0)}, v{S(i,0)}")
        for i in range(4):
            g(f"v_and_b32 v{X(i)}, v{S(i,1)}, v{vMask0}")
            g(f"v_and_b32 v{X(i)+1}, v{S(i,1)}, v{vMask1}")
        g(f"v_fma_f32 v{vL}, v{vL}, v{vA}, v{S(0,0)}")
        g(f"v_add_f32 v{S(1,0)}, v{S(1,0)}, v{S(2,0)}")
        g(f"v_add_f32 v{vL}, v{vL}, v{S(3,0)}")
        g(f"v_add_f32 v{vL}, v{vL}, v{S(1,0)}")
    def compute(m):
        p = m % 8
        if p < 4: QK(m)
        if p in (0, 1): PV(m - 2 + 16)
        if p == 4: SMA()
        if p == 5: SMB()
        if p == 6: SMC(); PV(m - 2)
        if p == 7: PV(m - 2)
    g.lab("L_loop")
    for m in range(16):
        g(f"s_waitcnt vmcnt({waits[m % len(waits)]})")
        issue(m + A)
        compute(m)
    g(f"s_sub_u32 s{sIt}, s{sIt}, 1")
    g(f"s_cmp_lg_u32 s{sIt}, 1")
    g("s_cbranch_scc1 L_loop")
    g.c("last two tiles: every remaining load goes out as soon as its registers are free")
    issued = A
    for n in range(A, 14):
        issue(n); issued = n + 1
    def tail_setup(helper=False):
        g.c("everything the tail needs (all loads are in flight meanwhile)")
        g("s_waitcnt lgkmcnt(0)")
        g(f"s_lshl_b32 s{sTmp}, s{sGrp}, 2")
        g(f"s_add_u32 s{sDp}, s12, s{sTmp}")
        g(f"s_addc_u32 s{sDp+1}, s13, 0")
        if chkit == 8 and not helper:
            g(f"s_load_dword s{sChk}, s[{sDp}:{sDp+1}], 0x0")
        g(f"s_mov_b32 s{sW}, s14")
        g(f"s_mov_b32 s{sW+1}, s15")
        g(f"s_mov_b32 s{sW+2}, {STBASE + (NWG*NW*64 if stamps else 0)}")
        g(f"s_mov_b32 s{sW+3}, 0x20000")
        g(f"s_add_u32 s{sOut}, s10, s{sTmp2}")
        g(f"s_addc_u32 s{sOut+1}, s11, 0")
        g(f"s_movk_i32 s{sOut+2}, 1024")
        g(f"s_mov_b32 s{sOut+3}, 0x20000")
        g(f"s_mov_b32 s{sDv}, s12")
        g(f"s_mov_b32 s{sDv+1}, s13")
        g(f"s_movk_i32 s{sDv+2}, 256")
        g(f"s_mov_b32 s{sDv+3}, 0x20000")
        g(f"s_lshl_b32 s{sSl}, s2, 12")
        for k in (1, 2, 3):
            g(f"s_xor_b32 s{sSl+k}, s{sSl}, {k*8*4096}")
        g.c("counter word expected when all four workgroups checked in from THIS XCC: 4 << (3*xcc); ids > 7 never match")
        g(f"s_getreg_b32 s{sExp}, hwreg(HW_REG_XCC_ID, 0, 4)")
        g(f"s_mul_i32 s{sTmp}, s{sExp}, 3")
        g(f"s_lshl_b32 s{sTmp}, 4, s{sTmp}")
        g(f"s_cmp_gt_u32 s{sExp}, 7")
        g(f"s_cselect_b32 s{sExp}, -1, s{sTmp}")
        if forcefb:
            g(f"s_mov_b32 s{sExp}, -1")
        g(f"v_lshlrev_b32 v{vOo}, 3, v0")
        g(f"v_bfe_u32 v{vLH}, v0, 1, 2")
        g(f"s_lshl_b32 s{sTmp}, s{sWave}, 5")
        g(f"v_lshl_add_u32 v{vMo}, v{vLH}, 3, s{sTmp}")
        g(f"v_lshlrev_b32 v{vOutA}, 8, v{vLH}")
        g(f"v_lshlrev_b32 v{vLH}, 5, v{vLH}")
        g(f"v_bfe_u32 v{vZero}, v0, 5, 2")
        g(f"v_lshl_add_u32 v{vOutA}, v{vZero}, 6, v{vOutA}")
        g(f"v_and_b32 v{vZero}, 1, v0")
        g(f"v_lshl_add_u32 v{vOutA}, v{vZero}, 5, v{vOutA}")
        g(f"v_bfe_u32 v{vZero}, v0, 7, 1")
        g(f"v_lshl_add_u32 v{vOutA}, v{vZero}, 3, v{vOutA}")
        g(f"v_bfe_u32 v{vZero}, v0, 3, 2")
        g(f"v_lshl_add_u32 v{vOutA}, v{vZero}, 1, v{vOutA}")
        g(f"v_mov_b32 v{vZero}, 0")
        g(f"s_lshl_b32 s{sTmp}, s{sWave}, 11")
        g(f"v_add_u32 v{vLO}, s{sTmp}, v{vLane16}")
        g(f"s_lshl_b32 s{sTmp}, s{sWave}, 3")
        g(f"v_lshl_add_u32 v{vLM}, v{vLane16}, 1, s{sTmp}")
        g(f"s_lshl_b32 s{sTmp}, s{sWave}, 2")
        g(f"v_mov_b32 v{vLK}, s{sTmp}")

    tail_setup()
    g.L.append("; WARM_BEGIN")
    def w(m): g(f"s_waitcnt vmcnt({issued - 1 - m})")
    for m in (0, 1):
        w(m); QK(m); PV(m + 14); issue(14 + m); issued = 15 + m
    for m in (2, 3):
        w(m); QK(m)
    SMA(4); SMB(); SMC()
    for m in (4, 5, 6, 7):
        w(m); PV(m)
    for m in (8, 9, 10, 11):
        w(m); QK(m)
    SMA(4); SMB(); SMC()
    g.c("row sums across the four key groups; publish (max, sum) and this wave's view of the counter to LDS")
    g(f"v_mov_b32 v{vT1}, v{vL}")
    g("s_waitcnt lgkmcnt(0)")
    g(f"s_and_b32 s{sChk}, s{sChk}, 0xffffff")
    g(f"v_permlane32_swap_b32 v{vL}, v{vT1}")
    g(f"s_cmp_eq_u32 s{sChk}, s{sExp}")
    g(f"s_cselect_b32 s{sOK}, 1, 0")
    g(f"v_add_f32 v{vL}, v{vL}, v{vT1}")
    g(f"v_mov_b32 v{vT1}, v{vL}")
    g(f"v_mov_b32 v{vM}, s{sOK}")
    g("s_nop 0")
    g(f"v_permlane16_swap_b32 v{vL}, v{vT1}")
    g("s_nop 1")
    g(f"v_add_f32 v{vL}, v{vL}, v{vT1}")
    g("s_mov_b64 exec, 0xf")
    g(f"ds_write_b64 v{vLM}, {vr(vMc,2)} offset:{LDS_ML}")
    g(f"ds_write_b32 v{vLK}, v{vM} offset:{LDS_OK}")
    g("s_mov_b64 exec, -1")
    g("s_nop 3")
    for m in (12, 13, 14, 15):
        w(m); PV(m)
    if stamps:
        g(f"s_memrealtime s[{sT0+4}:{sT0+5}]")
    def round_loads(extra=0):
        for k in (1, 2, 3):
            so = f"s{sSl+k}"
            if extra:
                g(f"s_add_u32 s{sTmp}, s{sSl+k}, {extra}"); so = f"s{sTmp}"
            g(f"buffer_load_dwordx2 {vr(vR+4*(k-1),2)}, v{vOo}, s[{sW}:{sW+3}], {so} offen sc1")
            g(f"buffer_load_dwordx2 {vr(vR+4*(k-1)+2,2)}, v{vMo}, s[{sW}:{sW+3}], {so} offen offset:2048 sc1")
    def publish(flags="", extra=0):
        so = f"s{sSl}"
        if extra:
            g(f"s_add_u32 s{sTmp}, s{sSl}, {extra}"); so = f"s{sTmp}"
        g(f"buffer_store_dwordx2 {vr(vP,2)}, v{vOo}, s[{sW}:{sW+3}], {so} offen {flags}")
        g("s_mov_b64 exec, 0x55")
        g(f"buffer_store_dwordx2 {vr(vP+2,2)}, v{vMo}, s[{sW}:{sW+3}], {so} offen offset:2048 {flags}")
        g("s_mov_b64 exec, -1")
    def round_check(target_ok):
        g(f"v_max3_u32 v{vT0}, v{vR}, v{vR+1}, v{vR+2}")
        g(f"v_max3_u32 v{vT1}, v{vR+3}, v{vR+4}, v{vR+5}")
        g(f"v_max3_u32 v{vT0}, v{vT0}, v{vR+6}, v{vR+7}")
        g(f"v_max3_u32 v{vT1}, v{vT1}, v{vR+8}, v{vR+9}")
        g(f"v_max3_u32 v{vT0}, v{vT0}, v{vR+10}, v{vR+11}")
        g(f"v_max_u32 v{vT0}, v{vT0}, v{vT1}")
        g(f"v_cmp_eq_u32 vcc, -1, v{vT0}")
        g(f"s_cbranch_vccz {target_ok}")
    g(f"s_cmp_eq_u32 s{sOK}, 0")
    g("s_cbranch_scc1 L_noearly")
    g.c("early look at the other three partials (valid: all four slots were marked empty before)")
    round_loads()
    g("s_branch L_wr")
    g.lab("L_noearly")
    g("s_nop 7")
    g.lab("L_wr")
    g(f"ds_write_b128 v{vLO}, {vr(vO,4)}")
    g(f"ds_write_b128 v{vLO}, {vr(vO+4,4)} offset:1024")
    vML = vB; vOw = vB + 8; vOKs = vQ
    g("s_waitcnt lgkmcnt(0)")
    g("s_barrier")
    g(f"ds_read_b128 {vr(vML,4)}, v{vLH} offset:{LDS_ML}")
    g(f"ds_read_b128 {vr(vML+4,4)}, v{vLH} offset:{LDS_ML+16}")
    g(f"ds_read_b128 {vr(vOKs,4)}, v{vZero} offset:{LDS_OK}")
    for wv in range(NW):
        g(f"ds_read_b64 {vr(vOw+2*wv,2)}, v{vOo} offset:{wv*2048}")
    g(f"s_mov_b32 s{sTmp}, 0xfffffffe")
    g("s_waitcnt lgkmcnt(4)")
    g(f"v_max_f32 v{vP+2}, v{vML}, v{vML+2}")
    g(f"v_and_b32 v{vOKs}, v{vOKs}, v{vOKs+1}")
    g(f"v_max3_f32 v{vP+2}, v{vP+2}, v{vML+4}, v{vML+6}")
    g(f"v_and_b32 v{vOKs+2}, v{vOKs+2}, v{vOKs+3}")
    for wv in range(NW):
        g(f"v_sub_f32 v{vML+2*wv}, v{vML+2*wv}, v{vP+2}")
    g(f"v_and_b32 v{vOKs}, v{vOKs}, v{vOKs+2}")
    for wv in range(NW):
        g(f"v_exp_f32 v{vML+2*wv}, v{vML+2*wv}")
    g(f"v_readfirstlane_b32 s{sOK}, v{vOKs}")
    g(f"v_mul_f32 v{vP+3}, v{vML}, v{vML+1}")
    for wv in range(1, NW):
        g(f"v_fmac_f32 v{vP+3}, v{vML+2*wv}, v{vML+2*wv+1}")
    g("s_waitcnt lgkmcnt(0)")
    g(f"v_mul_f32 v{vP}, v{vML}, v{vOw}")
    g(f"v_mul_f32 v{vP+1}, v{vML}, v{vOw+1}")
    for wv in range(1, NW):
        g(f"v_fmac_f32 v{vP}, v{vML+2*wv}, v{vOw+2*wv}")
        g(f"v_fmac_f32 v{vP+1}, v{vML+2*wv}, v{vOw+2*wv+1}")
    for r in (2, 3, 0, 1):
        g(f"v_min_u32 v{vP+r}, s{sTmp}, v{vP+r}")
    g(f"s_cmp_eq_u32 s{sOK}, 0")
    g("s_cbranch_scc1 L_slow")
    g("s_waitcnt vmcnt(0)")
    round_check("L_final")
    publish()
    round_loads()
    g("s_waitcnt vmcnt(0)")
    round_check("L_final")
    g.lab("L_round2")
    g.c("own partial is visible now: if another one is still missing, its owner will see ours and finish the job")
    round_loads()
    g("s_waitcnt vmcnt(0)")
    round_check("L_final")
    g("s_branch L_fin")
    g.lab("L_slow")
    g.c("placement unknown or different XCCs: publish in both regions, then one returning atomic decides")
    publish()
    publish("sc1", R2)
    g("s_waitcnt vmcnt(0)")
    g("s_barrier")
    g(f"s_cmp_lg_u32 s{sWave}, 0")
    g("s_cbranch_scc1 L_noatom")
    g("s_mov_b64 exec, 1")
    g(f"v_mov_b32 v{vT0}, 0x1000000")
    g(f"s_lshl_b32 s{sTmp}, s{sGrp}, 2")
    g(f"buffer_atomic_add v{vT0}, v{vZero}, s[{sDv}:{sDv+3}], s{sTmp} offen sc0")
    g("s_waitcnt vmcnt(0)")
    g(f"ds_write_b32 v{vZero}, v{vT0} offset:{LDS_FLAG}")
    g("s_mov_b64 exec, -1")
    g("s_waitcnt lgkmcnt(0)")
    g.lab("L_noatom")
    g("s_barrier")
    g(f"ds_read_b32 v{vT0}, v{vZero} offset:{LDS_FLAG}")
    g("s_waitcnt lgkmcnt(0)")
    g(f"v_readfirstlane_b32 s{sChk}, v{vT0}")
    g("s_nop 3")
    g(f"s_and_b32 s{sTmp}, s{sChk}, 0xffffff")
    g(f"s_cmp_eq_u32 s{sTmp}, s{sExp}")
    g("s_cbranch_scc1 L_round2")
    g(f"s_lshr_b32 s{sTmp}, s{sChk}, 24")
    g(f"s_cmp_lg_u32 s{sTmp}, 3")
    g("s_cbranch_scc1 L_fin")
    round_loads(R2)
    g("s_waitcnt vmcnt(0)")
    g.lab("L_final")
    R = lambda k, r: (vP + r) if k == 0 else (vR + 4 * (k - 1) + r)
    g(f"v_max_f32 v{vMc}, v{R(0,2)}, v{R(1,2)}")
    g(f"v_max3_f32 v{vMc}, v{vMc}, v{R(2,2)}, v{R(3,2)}")
    for k in range(4):
        g(f"v_sub_f32 v{R(k,2)}, v{R(k,2)}, v{vMc}")
    for k in range(4):
        g(f"v_exp_f32 v{R(k,2)}, v{R(k,2)}")
    g("s_nop 0")
    for r in (3, 0, 1):
        for k in range(4):
            g(f"v_mul_f32 v{R(k,r)}, v{R(k,r)}, v{R(k,2)}")
    for r in (3, 0, 1):
        g(f"v_add_f32 v{R(0,r)}, v{R(0,r)}, v{R(1,r)}")
        g(f"v_add_f32 v{R(2,r)}, v{R(2,r)}, v{R(3,r)}")
    g(f"v_add_f32 v{R(0,3)}, v{R(0,3)}, v{R(2,3)}")
    g(f"v_rcp_f32 v{vL}, v{R(0,3)}")
    g(f"v_add_f32 v{R(0,0)}, v{R(0,0)}, v{R(2,0)}")
    g(f"v_add_f32 v{R(0,1)}, v{R(0,1)}, v{R(2,1)}")
    g(f"v_mul_f32 v{R(0,0)}, v{R(0,0)}, v{vL}")
    g(f"v_mul_f32 v{R(0,1)}, v{R(0,1)}, v{vL}")
    g(f"v_cvt_pk_bf16_f32 v{R(0,0)}, v{R(0,0)}, v{R(0,1)}")
    g(f"buffer_store_short v{R(0,0)}, v{vOutA}, s[{sOut}:{sOut+3}], 0 offen")
    g(f"buffer_store_short_d16_hi v{R(0,0)}, v{vOutA}, s[{sOut}:{sOut+3}], 0 offen offset:16")
    g.L.append("; WARM_END")
    g.lab("L_fin")
    if stamps:
        g(f"s_memrealtime s[{sT0+6}:{sT0+7}]")
        g(f"s_getreg_b32 s{sT0+8}, hwreg(HW_REG_XCC_ID)")
        g(f"s_mov_b32 s{sT0+9}, s{sOK}")
        g("s_waitcnt lgkmcnt(0)")
        g(f"s_mul_i32 s{sTmp}, s2, {NW}")
        g(f"s_add_u32 s{sTmp}, s{sTmp}, s{sWave}")
        g(f"s_lshl_b32 s{sTmp}, s{sTmp}, 6")
        g(f"s_add_u32 s{sTmp}, s{sTmp}, {STBASE}")
        g("s_mov_b64 exec, 1")
        for j in range(10):
            g(f"v_mov_b32 v{vKV+j}, s{sT0+j}")
        g(f"v_mov_b32 v{vKV+12}, 0")
        g(f"buffer_store_dwordx4 {vr(vKV,4)}, v{vKV+12}, s[{sW}:{sW+3}], s{sTmp} offen")
        g(f"buffer_store_dwordx4 {vr(vKV+4,4)}, v{vKV+12}, s[{sW}:{sW+3}], s{sTmp} offen offset:16")
        g(f"buffer_store_dwordx2 {vr(vKV+8,2)}, v{vKV+12}, s[{sW}:{sW+3}], s{sTmp} offen offset:32")
    g.lab("L_done")
    g("s_endpgm")
    g.lab("L_helper")
    g.c("helper wave: mark this workgroup's partial slot as empty, then count this workgroup (and its XCC) in")
    g("s_load_dwordx4 s[12:15], s[0:1], 32")
    g(f"s_getreg_b32 s{sExp}, hwreg(HW_REG_XCC_ID, 0, 4)")
    g(f"v_and_b32 v{vVoff}, 63, v0")
    g(f"v_lshlrev_b32 v{vVoff}, 4, v{vVoff}")
    for r in range(4):
        g(f"v_mov_b32 v{vS+r}, -1")
    g(f"s_cmp_gt_u32 s{sExp}, 7")
    g("s_cbranch_scc1 L_done")
    g(f"s_mul_i32 s{sExp}, s{sExp}, 3")
    g(f"s_lshl_b32 s{sExp}, 1, s{sExp}")
    g(f"s_lshl_b32 s{sTmp}, s{sGrp}, 2")
    g(f"s_lshl_b32 s{sSl}, s2, 12")
    g(f"s_mov_b32 s{sW+2}, {STBASE}")
    g(f"s_mov_b32 s{sW+3}, 0x20000")
    g("s_waitcnt lgkmcnt(0)")
    g(f"s_mov_b32 s{sW}, s14")
    g(f"s_mov_b32 s{sW+1}, s15")
    for wv in range(2):
        g(f"buffer_store_dwordx4 {vr(vS,4)}, v{vVoff}, s[{sW}:{sW+3}], s{sSl} offen offset:{wv*1024}")
    g("s_mov_b64 exec, 0xff")
    g(f"buffer_store_dwordx4 {vr(vS,4)}, v{vVoff}, s[{sW}:{sW+3}], s{sSl} offen offset:2048")
    g(f"s_add_u32 s{sDp}, s12, s{sTmp}")
    g(f"s_addc_u32 s{sDp+1}, s13, 0")
    g("s_waitcnt vmcnt(0)")
    g(f"s_atomic_add s{sExp}, s[{sDp}:{sDp+1}], 0x0")
    if warm:
        g.c("then walk the tail code (one branch per cache line, no lane active) so it is in the instruction cache")
        g("s_waitcnt lgkmcnt(0)")
        g("s_mov_b64 exec, -1")
        g(f"s_lshl_b32 s{sTmp}, s{sGrp}, 21")
        g(f"s_add_u32 s{sK}, s6, s{sTmp}")
        g(f"s_addc_u32 s{sK+1}, s7, 0")
        g(f"s_add_u32 s{sV}, s8, s{sTmp}")
        g(f"s_addc_u32 s{sV+1}, s9, 0")
        tail_setup(True)
        g("s_mov_b64 exec, 0")
        g("s_branch L_hop0")
    else:
        g("s_endpgm")
    g.lab("L_codeend")
    g.L.append('.section .rodata,"a"')
    g.L.append(".p2align 6")
    g.L.append(f".amdhsa_kernel {NAME}_kernel")
    g.L.append(f"  .amdhsa_next_free_vgpr {nv}")
    g.L.append(f"  .amdhsa_next_free_sgpr 72")
    g.L.append(f"  .amdhsa_accum_offset {(nv+3)//4*4}")
    g.L.append("  .amdhsa_group_segment_fixed_size 0")
    g.L.append("  .amdhsa_kernarg_size 48")
    g.L.append("  .amdhsa_user_sgpr_count 2")
    g.L.append("  .amdhsa_user_sgpr_kernarg_segment_ptr 1")
    g.L.append("  .amdhsa_system_sgpr_workgroup_id_x 1")
    g.L.append(".end_amdhsa_kernel")
    if warm:
        return add_hops(g.L, warm)
    return g.text()

def add_hops(L, spacing):
    import subprocess, re
    L = "\n".join(L).split("\n")
    def is_insn(l):
        t = l.strip()
        return bool(t) and not t.startswith(";") and not t.startswith(".") and not t.endswith(":")
    tmp = [l if "L_hop0" not in l else "    s_branch L_done" for l in L]
    open("hop.s", "w").write("\n".join(tmp) + "\n")
    subprocess.run(["clang", "-x", "assembler", "-target", "amdgcn-amd-amdhsa", "-mcpu=gfx950", "-c", "hop.s", "-o", "hop.o"], check=True)
    d = subprocess.run(["llvm-objdump", "-d", "--mcpu=gfx950", "hop.o"], capture_output=True, text=True).stdout
    sizes = [4 * len(m.group(1).split()) for m in re.finditer(r"// [0-9A-F]{12}: ([0-9A-F ]+)$", d, re.M)]
    out = []; k = 0; inside = False; since = None; nh = 0
    txt_end = [i for i, l in enumerate(L) if l.startswith(".section")][0]
    for i, l in enumerate(L):
        if l.startswith("; WARM_BEGIN"):
            inside = True; since = 1 << 30; continue
        if l.startswith("; WARM_END"):
            inside = False
            out.append(f"L_hop{nh}:"); out.append("    s_cbranch_execz L_done"); continue
        if i < txt_end and is_insn(l):
            sz = sizes[k]; k += 1
            if inside:
                if since + sz > spacing:
                    out.append(f"L_hop{nh}:"); out.append(f"    s_cbranch_execz L_hop{nh+1}"); nh += 1; since = 4
                since += sz
        out.append(l)
    assert k == len(sizes), (k, len(sizes))
    return "\n".join(out) + "\n"

if __name__ == "__main__":
    ap = argparse.ArgumentParser()
    ap.add_argument("-o", default="cdna_kernels/" + NAME + ".s")
    ap.add_argument("--a", type=int, default=5)
    ap.add_argument("--waits", default="4")
    ap.add_argument("--ld", default="nt")
    ap.add_argument("--stamps", action="store_true")
    ap.add_argument("--forcefb", action="store_true")
    ap.add_argument("--chkit", type=int, default=8)
    ap.add_argument("--tog", type=lambda x: int(x, 0), default=0xc000)
    ap.add_argument("--cpf", action="store_true")
    ap.add_argument("--warm", type=int, default=0)
    ap.add_argument("--flat", action="store_true")
    ap.add_argument("--noimm", action="store_true")
    a = ap.parse_args()
    w = [int(x) for x in a.waits.split(",")]
    open(a.o, "w").write(gen(a.a, w, a.ld.replace("_", " ").replace("none", ""), a.stamps, a.forcefb, a.chkit, a.tog, a.cpf, a.warm, a.flat, a.noimm))
```

```python
import sys, math, argparse
from gen import HDR, NAME, G, vr, f2u

def gen(A=6, waits=(4, 4, 4, 5), ldflags="nt", stamps=False, forcefb=False, chkit=8, tog=0xc000, cpf=False, warm=0, flat=False, noimm=False, tau=0, t00=95, wlo=None, whi=None):
    g = G()
    NW = 4; NSPLIT = 4; NG = 64
    NWG = NG * NSPLIT
    T = 32
    GB = 2 << 20
    NT = 320
    LDS_ML = NW * 2048
    LDS_OK = LDS_ML + 4 * NW * 8
    LDS_FLAG = LDS_OK + 16
    LDS = LDS_FLAG + 16
    cscale = (128 ** -0.5) * math.log2(math.e)
    assert all(w <= A - 1 for w in waits) and A <= 12
    R2 = NWG * 4096
    STBASE = 2 * NWG * 4096

    vKoff = 1; vVoff = 2; vM = 3; vMc = 4; vL = 5; vMask0 = 6; vMask1 = 7
    vT0 = 8; vT1 = 9; vA = 10; vMcN = 11
    vQ = 12; vO = 16; vS = 24; vB = 40; vKV = 58
    vR = vS; vP = vS + 12
    e = vKV + 64
    vOo = e; vMo = e + 1; vOutA = e + 2; vLO = e + 3; vLM = e + 4; vLH = e + 5; vLK = e + 6; vZero = e + 7; vLane16 = e + 8
    nv = e + 9
    def slot(n): return vKV + (n % 16) * 4
    def X(i): return vB + 2 + 4 * i
    S = lambda i, r: vS + 4 * i + r

    sK = 16; sV = 20; sQ = 24; sW = 28; sOut = 32; sDv = 36
    sGrp = 40; sSplit = 41; sWave = 42; sKo = 43; sVo = 44; sC = 45; sIt = 46; sTmp = 47; sTmp2 = 48; sChk = 49
    sT0 = 50
    sDp = 60; sSl = 62; sOK = 67; sExp = 68; sCp = 4; sNow = 70; sTg = 72

    g.L.append(HDR.rstrip())
    if stamps: g.L.append(f"; STAMPBASE {STBASE}")
    g.L.append(f"; @launch grid=({NWG},1,1) block=({NT},1,1) lds={LDS}")
    g.L.append('.amdgcn_target "amdgcn-amd-amdhsa--gfx950"')
    g.L.append(".text")
    g.L.append(f".globl {NAME}_kernel")
    g.L.append(".p2align 8")
    g.L.append(f".type {NAME}_kernel,@function")
    g.lab(f"{NAME}_kernel")
    if stamps:
        g(f"s_memrealtime s[{sT0}:{sT0+1}]")
    g(f"s_cmpk_ge_u32 s2, {NWG}")
    g("s_cbranch_scc1 L_done")
    g(f"s_load_dwordx2 s[{sK}:{sK+1}], s[0:1], 8")
    if tau: g(f"s_memrealtime s[{sNow}:{sNow+1}]")
    g(f"s_load_dwordx2 s[{sV}:{sV+1}], s[0:1], 16")
    g(f"s_load_dwordx2 s[{sQ}:{sQ+1}], s[0:1], 0")
    g.c("wg = 8*jj + x ; split = jj&3 ; group = x + 8*(jj>>2)  (a group's 4 workgroups usually share an XCD: speed only)")
    g.c("byte offset of the first tile: group*2MiB + (4*split + wave)*4KiB  (tile = 16 keys; wave part lives in the VGPR offset)")
    g(f"s_and_b32 s{sGrp}, s2, 7")
    g(f"s_lshr_b32 s{sTmp}, s2, 5")
    g(f"s_lshl3_add_u32 s{sGrp}, s{sTmp}, s{sGrp}")
    g(f"s_and_b32 s{sTmp}, s2, 24")
    g(f"s_lshl_b32 s{sKo}, s{sGrp}, 21")
    g(f"s_lshl_b32 s{sTmp}, s{sTmp}, 11")
    g(f"s_or_b32 s{sKo}, s{sKo}, s{sTmp}")
    g(f"s_brev_b32 s{sK+2}, 16                     ; 128 MiB")
    g(f"s_lshl_b32 s{sK+3}, 1, 17                  ; 0x20000")
    g.c("lane l = 16g + 4a + b.  K: key a, bytes 64g+16b of the row.  Q: head b, bytes 64g+16a.  V: linear")
    g(f"v_readfirstlane_b32 s{sWave}, v0")
    g(f"v_and_b32 v{vT0}, 3, v0")
    g(f"v_and_b32 v{vT1}, 0xcc, v0")
    g(f"v_and_b32 v{vA}, 48, v0")
    g(f"v_lshlrev_b32 v{vKoff}, 4, v{vT0}")
    g(f"v_lshl_or_b32 v{vKoff}, v{vT1}, 6, v{vKoff}")
    g(f"v_lshl_or_b32 v{vKoff}, v{vA}, 2, v{vKoff}")
    g(f"s_cmpk_ge_u32 s{sWave}, 256")
    g("s_cbranch_scc1 L_helper")
    stride = 16 * 4096
    def issue(n):
        p = n % 8
        so, vo, srd = (sKo, vKoff, sK) if p < 4 else (sVo, vVoff, sV)
        g(f"buffer_load_dwordx4 {vr(slot(n),4)}, v{vo}, s[{srd}:{srd+3}], s{so} offen {ldflags}")
        if p % 4 == 3:
            g(f"s_add_u32 s{so}, s{so}, {stride-3072}")
            if tog: g(f"s_xor_b32 s{so}, s{so}, {tog:#x}")
        else:
            g(f"s_addk_i32 s{so}, 1024")
    g("s_waitcnt lgkmcnt(0)")
    g(f"buffer_load_dwordx4 {vr(slot(0),4)}, v{vKoff}, s[{sK}:{sK+3}], s{sKo} offen {ldflags}")
    g(f"s_mov_b32 s{sVo}, s{sKo}")
    g(f"s_addk_i32 s{sKo}, 1024")
    g(f"s_lshr_b32 s{sWave}, s{sWave}, 6")
    g(f"v_bfe_u32 v{vT1}, v0, 2, 2")
    g(f"v_lshlrev_b32 v{vMcN}, 8, v{vT0}")
    g(f"v_lshl_or_b32 v{vMcN}, v{vT1}, 4, v{vMcN}")
    g(f"v_lshl_or_b32 v{vMcN}, v{vA}, 2, v{vMcN}")
    g(f"s_lshl_b32 s{sTmp2}, s{sGrp}, 10")
    g(f"s_mov_b32 s{sQ+2}, 0x10000")
    g(f"s_mov_b32 s{sQ+3}, s{sK+3}")
    g(f"buffer_load_dwordx4 {vr(vQ,4)}, v{vMcN}, s[{sQ}:{sQ+3}], s{sTmp2} offen")
    g(f"v_and_b32 v{vLane16}, 63, v0")
    issue(1)
    g(f"v_and_b32 v{vVoff}, 0xc0, v0")
    issue(2)
    g(f"v_lshlrev_b32 v{vLane16}, 4, v{vLane16}       ; lane*16")
    issue(3)
    g(f"v_lshl_or_b32 v{vVoff}, v{vVoff}, 6, v{vLane16}")
    g(f"s_mov_b32 s{sV+2}, s{sK+2}")
    g(f"s_mov_b32 s{sV+3}, s{sK+3}")
    for n in range(4, A):
        issue(n)
    g("s_load_dwordx2 s[10:11], s[0:1], 24          ; out")
    g("s_load_dwordx4 s[12:15], s[0:1], 32")
    if cpf:
        g.c("pull this kernel's own code into L2 early")
        g(f"s_getpc_b64 s[{sCp}:{sCp+1}]")
        g.lab("L_pc")
        g(f"s_sub_u32 s{sCp}, s{sCp}, L_pc-{NAME}_kernel")
        g(f"s_subb_u32 s{sCp+1}, s{sCp+1}, 0")
        g(f"s_mov_b32 s{sCp+2}, L_codeend-{NAME}_kernel")
        g(f"s_mov_b32 s{sCp+3}, 0x20000")
        g(f"v_lshlrev_b32 v{vM}, 4, v0")
        g(f"buffer_load_dwordx4 {vr(slot(12),4)}, v{vM}, s[{sCp}:{sCp+3}], 0 offen")
    g(f"s_mov_b32 s{sC}, {f2u(cscale):#x}           ; D^-0.5 * log2(e)")
    g(f"v_mov_b32 v{vM}, 0xff800000")
    g(f"v_mov_b32 v{vMc}, v{vM}")
    g(f"v_mov_b32 v{vL}, 0")
    for r in range(8):
        g(f"v_mov_b32 v{vO+r}, 0")
    for r in range(18):
        g(f"v_mov_b32 v{vB+r}, 0")
    for r in range(8):
        g(f"v_mov_b32 v{slot(14)+r}, 0")
    g.c("P placement masks: column group a selects bf16 slot a of the B fragment")
    g(f"v_and_b32 v{vT0}, 1, v{vT1}")
    g(f"v_lshlrev_b32 v{vT0}, 4, v{vT0}")
    g(f"v_mov_b32 v{vA}, 0xffff")
    g(f"v_lshlrev_b32 v{vA}, v{vT0}, v{vA}")
    g(f"v_cmp_gt_u32 vcc, 2, v{vT1}")
    g(f"s_mov_b32 s{sIt}, {T//2}")
    g(f"s_mov_b32 s{sChk}, 0")
    g(f"v_cndmask_b32 v{vMask0}, 0, v{vA}, vcc")
    g(f"v_cndmask_b32 v{vMask1}, v{vA}, 0, vcc")
    if stamps:
        g(f"s_waitcnt vmcnt({A-1})")
        g(f"s_memrealtime s[{sT0+2}:{sT0+3}]")
    def QK(m):
        i = m % 8
        g(f"v_mfma_f32_16x16x32_bf16 {vr(S(i,0),4)}, {vr(slot(m),4)}, {vr(vQ,4)}, 0")
    def PV(mv):
        i = mv % 8 - 4
        g(f"v_mfma_f32_16x16x32_bf16 {vr(vO,4)}, {vr(slot(mv),4)}, {vr(X(i),4)}, {vr(vO,4)}")
        g(f"v_mfma_f32_16x16x32_bf16 {vr(vO+4,4)}, {vr(slot(mv),4)}, {vr(X(i)-2,4)}, {vr(vO+4,4)}")
    def SMA(nop=3):
        g(f"s_nop {nop}")
        for i in range(4):
            g(f"v_add_f32_dpp v{S(i,1)}, v{S(i,2)}, v{S(i,0)} row_ror:8 row_mask:0xf bank_mask:0x1")
        for i in range(4):
            g(f"v_add_f32_dpp v{S(i,1)}, v{S(i,0)}, v{S(i,2)} row_ror:8 row_mask:0xf bank_mask:0x4")
        for i in range(4):
            g(f"v_add_f32_dpp v{S(i,1)}, v{S(i,1)}, v{S(i,3)} row_ror:8 row_mask:0xf bank_mask:0x8")
        for i in range(4):
            g(f"v_add_f32_dpp v{S(i,1)}, v{S(i,3)}, v{S(i,1)} row_ror:8 row_mask:0xf bank_mask:0x2")
        for i in range(4):
            g(f"v_add_f32_dpp v{S(i,0)}, v{S(i,1)}, v{S(i,1)} row_ror:4 row_mask:0xf bank_mask:0xf")
    def SMB():
        g(f"v_max3_f32 v{vT0}, v{S(0,0)}, v{S(1,0)}, v{S(2,0)}")
        g(f"v_max3_f32 v{vT0}, v{vT0}, v{S(3,0)}, v{vM}")
        g(f"v_mov_b32 v{vT1}, v{vT0}")
        g("s_nop 1")
        g(f"v_permlane32_swap_b32 v{vT0}, v{vT1}")
        g("s_nop 1")
        g(f"v_max_f32 v{vT0}, v{vT0}, v{vT1}")
        g(f"v_mov_b32 v{vT1}, v{vT0}")
        g("s_nop 1")
        g(f"v_permlane16_swap_b32 v{vT0}, v{vT1}")
        g("s_nop 1")
        g(f"v_max_f32 v{vM}, v{vT0}, v{vT1}")
        g(f"v_mul_f32 v{vMcN}, s{sC}, v{vM}")
        g(f"v_sub_f32 v{vA}, v{vMc}, v{vMcN}")
        g(f"v_exp_f32 v{vA}, v{vA}")
        for i in range(4):
            g(f"v_fma_f32 v{S(i,0)}, v{S(i,0)}, s{sC}, -v{vMcN}")
        for i in range(4):
            g(f"v_exp_f32 v{S(i,0)}, v{S(i,0)}")
        g(f"v_mov_b32 v{vMc}, v{vMcN}")
    def SMC():
        for r in range(8):
            g(f"v_mul_f32 v{vO+r}, v{vO+r}, v{vA}")
        for i in range(4):
            g(f"v_cvt_pk_bf16_f32 v{S(i,1)}, v{S(i,0)}, v{S(i,0)}")
        for i in range(4):
            g(f"v_and_b32 v{X(i)}, v{S(i,1)}, v{vMask0}")
            g(f"v_and_b32 v{X(i)+1}, v{S(i,1)}, v{vMask1}")
        g(f"v_fma_f32 v{vL}, v{vL}, v{vA}, v{S(0,0)}")
        g(f"v_add_f32 v{S(1,0)}, v{S(1,0)}, v{S(2,0)}")
        g(f"v_add_f32 v{vL}, v{vL}, v{S(3,0)}")
        g(f"v_add_f32 v{vL}, v{vL}, v{S(1,0)}")
    def compute(m):
        p = m % 8
        if p < 4: QK(m)
        if p in (0, 1): PV(m - 2 + 16)
        if p == 4: SMA()
        if p == 5: SMB()
        if p == 6: SMC(); PV(m - 2)
        if p == 7: PV(m - 2)
    if not tau:
        g.lab("L_loop")
        for m in range(16):
            g(f"s_waitcnt vmcnt({waits[m % len(waits)]})")
            issue(m + A)
            compute(m)
        g(f"s_sub_u32 s{sIt}, s{sIt}, 1")
        g(f"s_cmp_lg_u32 s{sIt}, 1")
        g("s_cbranch_scc1 L_loop")
    else:
        g("s_waitcnt lgkmcnt(0)")
        g(f"s_add_u32 s{sTg}, s{sNow}, {t00}")
        def body(name, ws_):
            g.lab(name)
            for m in range(16):
                if m == 14:
                    g(f"s_memrealtime s[{sNow}:{sNow+1}]")
                g(f"s_waitcnt vmcnt({ws_[m % len(ws_)]})")
                issue(m + A)
                compute(m)
            g(f"s_sub_u32 s{sIt}, s{sIt}, 1")
            g(f"s_cmp_eq_u32 s{sIt}, 1")
            g("s_cbranch_scc1 L_last")
            g(f"s_add_u32 s{sTg}, s{sTg}, {tau}")
            g("s_waitcnt lgkmcnt(0)")
            g(f"s_sub_u32 s{sTmp}, s{sNow}, s{sTg}")
            g(f"s_cmp_gt_i32 s{sTmp}, 0")
        body("L_loop", wlo)
        g("s_cbranch_scc0 L_loop")
        body("L_loopB", whi)
        g("s_cbranch_scc1 L_loopB")
        g("s_branch L_loop")
        g.lab("L_last")
    g.c("last two tiles: every remaining load goes out as soon as its registers are free")
    issued = A
    for n in range(A, 14):
        issue(n); issued = n + 1
    def tail_setup(helper=False):
        g.c("everything the tail needs (all loads are in flight meanwhile)")
        g("s_waitcnt lgkmcnt(0)")
        g(f"s_lshl_b32 s{sTmp}, s{sGrp}, 2")
        g(f"s_add_u32 s{sDp}, s12, s{sTmp}")
        g(f"s_addc_u32 s{sDp+1}, s13, 0")
        if chkit == 8 and not helper:
            g(f"s_load_dword s{sChk}, s[{sDp}:{sDp+1}], 0x0")
        g(f"s_mov_b32 s{sW}, s14")
        g(f"s_mov_b32 s{sW+1}, s15")
        g(f"s_mov_b32 s{sW+2}, {STBASE + (NWG*NW*64 if stamps else 0)}")
        g(f"s_mov_b32 s{sW+3}, 0x20000")
        g(f"s_add_u32 s{sOut}, s10, s{sTmp2}")
        g(f"s_addc_u32 s{sOut+1}, s11, 0")
        g(f"s_movk_i32 s{sOut+2}, 1024")
        g(f"s_mov_b32 s{sOut+3}, 0x20000")
        g(f"s_mov_b32 s{sDv}, s12")
        g(f"s_mov_b32 s{sDv+1}, s13")
        g(f"s_movk_i32 s{sDv+2}, 256")
        g(f"s_mov_b32 s{sDv+3}, 0x20000")
        g(f"s_lshl_b32 s{sSl}, s2, 12")
        for k in (1, 2, 3):
            g(f"s_xor_b32 s{sSl+k}, s{sSl}, {k*8*4096}")
        g.c("counter word expected when all four workgroups checked in from THIS XCC: 4 << (3*xcc); ids > 7 never match")
        g(f"s_getreg_b32 s{sExp}, hwreg(HW_REG_XCC_ID, 0, 4)")
        g(f"s_mul_i32 s{sTmp}, s{sExp}, 3")
        g(f"s_lshl_b32 s{sTmp}, 4, s{sTmp}")
        g(f"s_cmp_gt_u32 s{sExp}, 7")
        g(f"s_cselect_b32 s{sExp}, -1, s{sTmp}")
        if forcefb:
            g(f"s_mov_b32 s{sExp}, -1")
        g(f"v_lshlrev_b32 v{vOo}, 3, v0")
        g(f"v_bfe_u32 v{vLH}, v0, 1, 2")
        g(f"s_lshl_b32 s{sTmp}, s{sWave}, 5")
        g(f"v_lshl_add_u32 v{vMo}, v{vLH}, 3, s{sTmp}")
        g(f"v_lshlrev_b32 v{vOutA}, 8, v{vLH}")
        g(f"v_lshlrev_b32 v{vLH}, 5, v{vLH}")
        g(f"v_bfe_u32 v{vZero}, v0, 5, 2")
        g(f"v_lshl_add_u32 v{vOutA}, v{vZero}, 6, v{vOutA}")
        g(f"v_and_b32 v{vZero}, 1, v0")
        g(f"v_lshl_add_u32 v{vOutA}, v{vZero}, 5, v{vOutA}")
        g(f"v_bfe_u32 v{vZero}, v0, 7, 1")
        g(f"v_lshl_add_u32 v{vOutA}, v{vZero}, 3, v{vOutA}")
        g(f"v_bfe_u32 v{vZero}, v0, 3, 2")
        g(f"v_lshl_add_u32 v{vOutA}, v{vZero}, 1, v{vOutA}")
        g(f"v_mov_b32 v{vZero}, 0")
        g(f"s_lshl_b32 s{sTmp}, s{sWave}, 11")
        g(f"v_add_u32 v{vLO}, s{sTmp}, v{vLane16}")
        g(f"s_lshl_b32 s{sTmp}, s{sWave}, 3")
        g(f"v_lshl_add_u32 v{vLM}, v{vLane16}, 1, s{sTmp}")
        g(f"s_lshl_b32 s{sTmp}, s{sWave}, 2")
        g(f"v_mov_b32 v{vLK}, s{sTmp}")

    tail_setup()
    g.L.append("; WARM_BEGIN")
    def w(m): g(f"s_waitcnt vmcnt({issued - 1 - m})")
    for m in (0, 1):
        w(m); QK(m); PV(m + 14); issue(14 + m); issued = 15 + m
    for m in (2, 3):
        w(m); QK(m)
    SMA(4); SMB(); SMC()
    for m in (4, 5, 6, 7):
        w(m); PV(m)
    for m in (8, 9, 10, 11):
        w(m); QK(m)
    SMA(4); SMB(); SMC()
    g.c("row sums across the four key groups; publish (max, sum) and this wave's view of the counter to LDS")
    g(f"v_mov_b32 v{vT1}, v{vL}")
    g("s_waitcnt lgkmcnt(0)")
    g(f"s_and_b32 s{sChk}, s{sChk}, 0xffffff")
    g(f"v_permlane32_swap_b32 v{vL}, v{vT1}")
    g(f"s_cmp_eq_u32 s{sChk}, s{sExp}")
    g(f"s_cselect_b32 s{sOK}, 1, 0")
    g(f"v_add_f32 v{vL}, v{vL}, v{vT1}")
    g(f"v_mov_b32 v{vT1}, v{vL}")
    g(f"v_mov_b32 v{vM}, s{sOK}")
    g("s_nop 0")
    g(f"v_permlane16_swap_b32 v{vL}, v{vT1}")
    g("s_nop 1")
    g(f"v_add_f32 v{vL}, v{vL}, v{vT1}")
    g("s_mov_b64 exec, 0xf")
    g(f"ds_write_b64 v{vLM}, {vr(vMc,2)} offset:{LDS_ML}")
    g(f"ds_write_b32 v{vLK}, v{vM} offset:{LDS_OK}")
    g("s_mov_b64 exec, -1")
    g("s_nop 3")
    for m in (12, 13, 14, 15):
        w(m); PV(m)
    if stamps:
        g(f"s_memrealtime s[{sT0+4}:{sT0+5}]")
    def round_loads(extra=0):
        for k in (1, 2, 3):
            so = f"s{sSl+k}"
            if extra:
                g(f"s_add_u32 s{sTmp}, s{sSl+k}, {extra}"); so = f"s{sTmp}"
            g(f"buffer_load_dwordx2 {vr(vR+4*(k-1),2)}, v{vOo}, s[{sW}:{sW+3}], {so} offen sc1")
            g(f"buffer_load_dwordx2 {vr(vR+4*(k-1)+2,2)}, v{vMo}, s[{sW}:{sW+3}], {so} offen offset:2048 sc1")
    def publish(flags="", extra=0):
        so = f"s{sSl}"
        if extra:
            g(f"s_add_u32 s{sTmp}, s{sSl}, {extra}"); so = f"s{sTmp}"
        g(f"buffer_store_dwordx2 {vr(vP,2)}, v{vOo}, s[{sW}:{sW+3}], {so} offen {flags}")
        g("s_mov_b64 exec, 0x55")
        g(f"buffer_store_dwordx2 {vr(vP+2,2)}, v{vMo}, s[{sW}:{sW+3}], {so} offen offset:2048 {flags}")
        g("s_mov_b64 exec, -1")
    def round_check(target_ok):
        g(f"v_max3_u32 v{vT0}, v{vR}, v{vR+1}, v{vR+2}")
        g(f"v_max3_u32 v{vT1}, v{vR+3}, v{vR+4}, v{vR+5}")
        g(f"v_max3_u32 v{vT0}, v{vT0}, v{vR+6}, v{vR+7}")
        g(f"v_max3_u32 v{vT1}, v{vT1}, v{vR+8}, v{vR+9}")
        g(f"v_max3_u32 v{vT0}, v{vT0}, v{vR+10}, v{vR+11}")
        g(f"v_max_u32 v{vT0}, v{vT0}, v{vT1}")
        g(f"v_cmp_eq_u32 vcc, -1, v{vT0}")
        g(f"s_cbranch_vccz {target_ok}")
    g(f"s_cmp_eq_u32 s{sOK}, 0")
    g("s_cbranch_scc1 L_noearly")
    g.c("early look at the other three partials (valid: all four slots were marked empty before)")
    round_loads()
    g("s_branch L_wr")
    g.lab("L_noearly")
    g("s_nop 7")
    g.lab("L_wr")
    g(f"ds_write_b128 v{vLO}, {vr(vO,4)}")
    g(f"ds_write_b128 v{vLO}, {vr(vO+4,4)} offset:1024")
    vML = vB; vOw = vB + 8; vOKs = vQ
    g("s_waitcnt lgkmcnt(0)")
    g("s_barrier")
    g(f"ds_read_b128 {vr(vML,4)}, v{vLH} offset:{LDS_ML}")
    g(f"ds_read_b128 {vr(vML+4,4)}, v{vLH} offset:{LDS_ML+16}")
    g(f"ds_read_b128 {vr(vOKs,4)}, v{vZero} offset:{LDS_OK}")
    for wv in range(NW):
        g(f"ds_read_b64 {vr(vOw+2*wv,2)}, v{vOo} offset:{wv*2048}")
    g(f"s_mov_b32 s{sTmp}, 0xfffffffe")
    g("s_waitcnt lgkmcnt(4)")
    g(f"v_max_f32 v{vP+2}, v{vML}, v{vML+2}")
    g(f"v_and_b32 v{vOKs}, v{vOKs}, v{vOKs+1}")
    g(f"v_max3_f32 v{vP+2}, v{vP+2}, v{vML+4}, v{vML+6}")
    g(f"v_and_b32 v{vOKs+2}, v{vOKs+2}, v{vOKs+3}")
    for wv in range(NW):
        g(f"v_sub_f32 v{vML+2*wv}, v{vML+2*wv}, v{vP+2}")
    g(f"v_and_b32 v{vOKs}, v{vOKs}, v{vOKs+2}")
    for wv in range(NW):
        g(f"v_exp_f32 v{vML+2*wv}, v{vML+2*wv}")
    g(f"v_readfirstlane_b32 s{sOK}, v{vOKs}")
    g(f"v_mul_f32 v{vP+3}, v{vML}, v{vML+1}")
    for wv in range(1, NW):
        g(f"v_fmac_f32 v{vP+3}, v{vML+2*wv}, v{vML+2*wv+1}")
    g("s_waitcnt lgkmcnt(0)")
    g(f"v_mul_f32 v{vP}, v{vML}, v{vOw}")
    g(f"v_mul_f32 v{vP+1}, v{vML}, v{vOw+1}")
    for wv in range(1, NW):
        g(f"v_fmac_f32 v{vP}, v{vML+2*wv}, v{vOw+2*wv}")
        g(f"v_fmac_f32 v{vP+1}, v{vML+2*wv}, v{vOw+2*wv+1}")
    for r in (2, 3, 0, 1):
        g(f"v_min_u32 v{vP+r}, s{sTmp}, v{vP+r}")
    g(f"s_cmp_eq_u32 s{sOK}, 0")
    g("s_cbranch_scc1 L_slow")
    g("s_waitcnt vmcnt(0)")
    round_check("L_final")
    publish()
    round_loads()
    g("s_waitcnt vmcnt(0)")
    round_check("L_final")
    g.lab("L_round2")
    g.c("own partial is visible now: if another one is still missing, its owner will see ours and finish the job")
    round_loads()
    g("s_waitcnt vmcnt(0)")
    round_check("L_final")
    g("s_branch L_fin")
    g.lab("L_slow")
    g.c("placement unknown or different XCCs: publish in both regions, then one returning atomic decides")
    publish()
    publish("sc1", R2)
    g("s_waitcnt vmcnt(0)")
    g("s_barrier")
    g(f"s_cmp_lg_u32 s{sWave}, 0")
    g("s_cbranch_scc1 L_noatom")
    g("s_mov_b64 exec, 1")
    g(f"v_mov_b32 v{vT0}, 0x1000000")
    g(f"s_lshl_b32 s{sTmp}, s{sGrp}, 2")
    g(f"buffer_atomic_add v{vT0}, v{vZero}, s[{sDv}:{sDv+3}], s{sTmp} offen sc0")
    g("s_waitcnt vmcnt(0)")
    g(f"ds_write_b32 v{vZero}, v{vT0} offset:{LDS_FLAG}")
    g("s_mov_b64 exec, -1")
    g("s_waitcnt lgkmcnt(0)")
    g.lab("L_noatom")
    g("s_barrier")
    g(f"ds_read_b32 v{vT0}, v{vZero} offset:{LDS_FLAG}")
    g("s_waitcnt lgkmcnt(0)")
    g(f"v_readfirstlane_b32 s{sChk}, v{vT0}")
    g("s_nop 3")
    g(f"s_and_b32 s{sTmp}, s{sChk}, 0xffffff")
    g(f"s_cmp_eq_u32 s{sTmp}, s{sExp}")
    g("s_cbranch_scc1 L_round2")
    g(f"s_lshr_b32 s{sTmp}, s{sChk}, 24")
    g(f"s_cmp_lg_u32 s{sTmp}, 3")
    g("s_cbranch_scc1 L_fin")
    round_loads(R2)
    g("s_waitcnt vmcnt(0)")
    g.lab("L_final")
    R = lambda k, r: (vP + r) if k == 0 else (vR + 4 * (k - 1) + r)
    g(f"v_max_f32 v{vMc}, v{R(0,2)}, v{R(1,2)}")
    g(f"v_max3_f32 v{vMc}, v{vMc}, v{R(2,2)}, v{R(3,2)}")
    for k in range(4):
        g(f"v_sub_f32 v{R(k,2)}, v{R(k,2)}, v{vMc}")
    for k in range(4):
        g(f"v_exp_f32 v{R(k,2)}, v{R(k,2)}")
    g("s_nop 0")
    for r in (3, 0, 1):
        for k in range(4):
            g(f"v_mul_f32 v{R(k,r)}, v{R(k,r)}, v{R(k,2)}")
    for r in (3, 0, 1):
        g(f"v_add_f32 v{R(0,r)}, v{R(0,r)}, v{R(1,r)}")
        g(f"v_add_f32 v{R(2,r)}, v{R(2,r)}, v{R(3,r)}")
    g(f"v_add_f32 v{R(0,3)}, v{R(0,3)}, v{R(2,3)}")
    g(f"v_rcp_f32 v{vL}, v{R(0,3)}")
    g(f"v_add_f32 v{R(0,0)}, v{R(0,0)}, v{R(2,0)}")
    g(f"v_add_f32 v{R(0,1)}, v{R(0,1)}, v{R(2,1)}")
    g(f"v_mul_f32 v{R(0,0)}, v{R(0,0)}, v{vL}")
    g(f"v_mul_f32 v{R(0,1)}, v{R(0,1)}, v{vL}")
    g(f"v_cvt_pk_bf16_f32 v{R(0,0)}, v{R(0,0)}, v{R(0,1)}")
    g(f"buffer_store_short v{R(0,0)}, v{vOutA}, s[{sOut}:{sOut+3}], 0 offen")
    g(f"buffer_store_short_d16_hi v{R(0,0)}, v{vOutA}, s[{sOut}:{sOut+3}], 0 offen offset:16")
    g.L.append("; WARM_END")
    g.lab("L_fin")
    if stamps:
        g(f"s_memrealtime s[{sT0+6}:{sT0+7}]")
        g(f"s_getreg_b32 s{sT0+8}, hwreg(HW_REG_XCC_ID)")
        g(f"s_mov_b32 s{sT0+9}, s{sOK}")
        g("s_waitcnt lgkmcnt(0)")
        g(f"s_mul_i32 s{sTmp}, s2, {NW}")
        g(f"s_add_u32 s{sTmp}, s{sTmp}, s{sWave}")
        g(f"s_lshl_b32 s{sTmp}, s{sTmp}, 6")
        g(f"s_add_u32 s{sTmp}, s{sTmp}, {STBASE}")
        g("s_mov_b64 exec, 1")
        for j in range(10):
            g(f"v_mov_b32 v{vKV+j}, s{sT0+j}")
        g(f"v_mov_b32 v{vKV+12}, 0")
        g(f"buffer_store_dwordx4 {vr(vKV,4)}, v{vKV+12}, s[{sW}:{sW+3}], s{sTmp} offen")
        g(f"buffer_store_dwordx4 {vr(vKV+4,4)}, v{vKV+12}, s[{sW}:{sW+3}], s{sTmp} offen offset:16")
        g(f"buffer_store_dwordx2 {vr(vKV+8,2)}, v{vKV+12}, s[{sW}:{sW+3}], s{sTmp} offen offset:32")
    g.lab("L_done")
    g("s_endpgm")
    g.lab("L_helper")
    g.c("helper wave: mark this workgroup's partial slot as empty, then count this workgroup (and its XCC) in")
    g("s_load_dwordx4 s[12:15], s[0:1], 32")
    g(f"s_getreg_b32 s{sExp}, hwreg(HW_REG_XCC_ID, 0, 4)")
    g(f"v_and_b32 v{vVoff}, 63, v0")
    g(f"v_lshlrev_b32 v{vVoff}, 4, v{vVoff}")
    for r in range(4):
        g(f"v_mov_b32 v{vS+r}, -1")
    g(f"s_cmp_gt_u32 s{sExp}, 7")
    g("s_cbranch_scc1 L_done")
    g(f"s_mul_i32 s{sExp}, s{sExp}, 3")
    g(f"s_lshl_b32 s{sExp}, 1, s{sExp}")
    g(f"s_lshl_b32 s{sTmp}, s{sGrp}, 2")
    g(f"s_lshl_b32 s{sSl}, s2, 12")
    g(f"s_mov_b32 s{sW+2}, {STBASE}")
    g(f"s_mov_b32 s{sW+3}, 0x20000")
    g("s_waitcnt lgkmcnt(0)")
    g(f"s_mov_b32 s{sW}, s14")
    g(f"s_mov_b32 s{sW+1}, s15")
    for wv in range(2):
        g(f"buffer_store_dwordx4 {vr(vS,4)}, v{vVoff}, s[{sW}:{sW+3}], s{sSl} offen offset:{wv*1024}")
    g("s_mov_b64 exec, 0xff")
    g(f"buffer_store_dwordx4 {vr(vS,4)}, v{vVoff}, s[{sW}:{sW+3}], s{sSl} offen offset:2048")
    g(f"s_add_u32 s{sDp}, s12, s{sTmp}")
    g(f"s_addc_u32 s{sDp+1}, s13, 0")
    g("s_waitcnt vmcnt(0)")
    g(f"s_atomic_add s{sExp}, s[{sDp}:{sDp+1}], 0x0")
    if warm:
        g.c("then walk the tail code (one branch per cache line, no lane active) so it is in the instruction cache")
        g("s_waitcnt lgkmcnt(0)")
        g("s_mov_b64 exec, -1")
        g(f"s_lshl_b32 s{sTmp}, s{sGrp}, 21")
        g(f"s_add_u32 s{sK}, s6, s{sTmp}")
        g(f"s_addc_u32 s{sK+1}, s7, 0")
        g(f"s_add_u32 s{sV}, s8, s{sTmp}")
        g(f"s_addc_u32 s{sV+1}, s9, 0")
        tail_setup(True)
        g("s_mov_b64 exec, 0")
        g("s_branch L_hop0")
    else:
        g("s_endpgm")
    g.lab("L_codeend")
    g.L.append('.section .rodata,"a"')
    g.L.append(".p2align 6")
    g.L.append(f".amdhsa_kernel {NAME}_kernel")
    g.L.append(f"  .amdhsa_next_free_vgpr {nv}")
    g.L.append(f"  .amdhsa_next_free_sgpr 76")
    g.L.append(f"  .amdhsa_accum_offset {(nv+3)//4*4}")
    g.L.append("  .amdhsa_group_segment_fixed_size 0")
    g.L.append("  .amdhsa_kernarg_size 48")
    g.L.append("  .amdhsa_user_sgpr_count 2")
    g.L.append("  .amdhsa_user_sgpr_kernarg_segment_ptr 1")
    g.L.append("  .amdhsa_system_sgpr_workgroup_id_x 1")
    g.L.append(".end_amdhsa_kernel")
    if warm:
        return add_hops(g.L, warm)
    return g.text()

def add_hops(L, spacing):
    import subprocess, re
    L = "\n".join(L).split("\n")
    def is_insn(l):
        t = l.strip()
        return bool(t) and not t.startswith(";") and not t.startswith(".") and not t.endswith(":")
    tmp = [l if "L_hop0" not in l else "    s_branch L_done" for l in L]
    open("hop.s", "w").write("\n".join(tmp) + "\n")
    subprocess.run(["clang", "-x", "assembler", "-target", "amdgcn-amd-amdhsa", "-mcpu=gfx950", "-c", "hop.s", "-o", "hop.o"], check=True)
    d = subprocess.run(["llvm-objdump", "-d", "--mcpu=gfx950", "hop.o"], capture_output=True, text=True).stdout
    sizes = [4 * len(m.group(1).split()) for m in re.finditer(r"// [0-9A-F]{12}: ([0-9A-F ]+)$", d, re.M)]
    out = []; k = 0; inside = False; since = None; nh = 0
    txt_end = [i for i, l in enumerate(L) if l.startswith(".section")][0]
    for i, l in enumerate(L):
        if l.startswith("; WARM_BEGIN"):
            inside = True; since = 1 << 30; continue
        if l.startswith("; WARM_END"):
            inside = False
            out.append(f"L_hop{nh}:"); out.append("    s_cbranch_execz L_done"); continue
        if i < txt_end and is_insn(l):
            sz = sizes[k]; k += 1
            if inside:
                if since + sz > spacing:
                    out.append(f"L_hop{nh}:"); out.append(f"    s_cbranch_execz L_hop{nh+1}"); nh += 1; since = 4
                since += sz
        out.append(l)
    assert k == len(sizes), (k, len(sizes))
    return "\n".join(out) + "\n"

if __name__ == "__main__":
    ap = argparse.ArgumentParser()
    ap.add_argument("-o", default="cdna_kernels/" + NAME + ".s")
    ap.add_argument("--a", type=int, default=5)
    ap.add_argument("--waits", default="4")
    ap.add_argument("--ld", default="nt")
    ap.add_argument("--stamps", action="store_true")
    ap.add_argument("--forcefb", action="store_true")
    ap.add_argument("--chkit", type=int, default=8)
    ap.add_argument("--tog", type=lambda x: int(x, 0), default=0xc000)
    ap.add_argument("--cpf", action="store_true")
    ap.add_argument("--warm", type=int, default=0)
    ap.add_argument("--flat", action="store_true")
    ap.add_argument("--noimm", action="store_true")
    ap.add_argument("--tau", type=int, default=0)
    ap.add_argument("--t00", type=int, default=70)
    ap.add_argument("--wlo", default="4")
    ap.add_argument("--whi", default="5")
    a = ap.parse_args()
    w = [int(x) for x in a.waits.split(",")]
    open(a.o, "w").write(gen(a.a, w, a.ld.replace("_", " ").replace("none", ""), a.stamps, a.forcefb, a.chkit, a.tog, a.cpf, a.warm, a.flat, a.noimm, a.tau, a.t00, [int(x) for x in a.wlo.split(",")], [int(x) for x in a.whi.split(",")]))
```

```python
import sys, math, argparse
from gen import HDR, NAME, G, vr, f2u

def gen(A=6, waits=(4, 4, 4, 5), ldflags="nt", stamps=False, forcefb=False, chkit=8, tog=0xc000, cpf=False, warm=0, flat=False, noimm=False, tau=0, t00=95, wlo=None, whi=None, org1=False):
    g = G()
    NW = 4; NSPLIT = 4; NG = 64
    NWG = NG * NSPLIT
    T = 32
    GB = 2 << 20
    NT = 320
    LDS_ML = NW * 2048
    LDS_OK = LDS_ML + 4 * NW * 8
    LDS_FLAG = LDS_OK + 16
    LDS = LDS_FLAG + 16
    cscale = (128 ** -0.5) * math.log2(math.e)
    assert all(w <= A - 1 for w in waits) and A <= 12
    R2 = NWG * 4096
    STBASE = 2 * NWG * 4096

    vKoff = 1; vVoff = 2; vM = 3; vMc = 4; vL = 5; vMask0 = 6; vMask1 = 7
    vT0 = 8; vT1 = 9; vA = 10; vMcN = 11
    vQ = 12; vO = 16; vS = 24; vB = 40; vKV = 58
    vR = vS; vP = vS + 12
    e = vKV + 64
    vOo = e; vMo = e + 1; vOutA = e + 2; vLO = e + 3; vLM = e + 4; vLH = e + 5; vLK = e + 6; vZero = e + 7; vLane16 = e + 8
    nv = e + 9
    def slot(n): return vKV + (n % 16) * 4
    def X(i): return vB + 2 + 4 * i
    S = lambda i, r: vS + 4 * i + r

    sK = 16; sV = 20; sQ = 24; sW = 28; sOut = 32; sDv = 36
    sGrp = 40; sSplit = 41; sWave = 42; sKo = 43; sVo = 44; sC = 45; sIt = 46; sTmp = 47; sTmp2 = 48; sChk = 49
    sT0 = 50
    sDp = 60; sSl = 62; sOK = 67; sExp = 68; sCp = 4; sNow = 70; sTg = 72

    g.L.append(HDR.rstrip())
    if stamps: g.L.append(f"; STAMPBASE {STBASE}")
    g.L.append(f"; @launch grid=({NWG},1,1) block=({NT},1,1) lds={LDS}")
    g.L.append('.amdgcn_target "amdgcn-amd-amdhsa--gfx950"')
    g.L.append(".text")
    g.L.append(f".globl {NAME}_kernel")
    g.L.append(".p2align 8")
    g.L.append(f".type {NAME}_kernel,@function")
    g.lab(f"{NAME}_kernel")
    if stamps:
        g(f"s_memrealtime s[{sT0}:{sT0+1}]")
    g(f"s_cmpk_ge_u32 s2, {NWG}")
    g("s_cbranch_scc1 L_done")
    g(f"s_load_dwordx2 s[{sK}:{sK+1}], s[0:1], 8")
    if tau and not org1: g(f"s_memrealtime s[{sNow}:{sNow+1}]")
    g(f"s_load_dwordx2 s[{sV}:{sV+1}], s[0:1], 16")
    g(f"s_load_dwordx2 s[{sQ}:{sQ+1}], s[0:1], 0")
    g.c("wg = 8*jj + x ; split = jj&3 ; group = x + 8*(jj>>2)  (a group's 4 workgroups usually share an XCD: speed only)")
    g.c("byte offset of the first tile: group*2MiB + (4*split + wave)*4KiB  (tile = 16 keys; wave part lives in the VGPR offset)")
    g(f"s_and_b32 s{sGrp}, s2, 7")
    g(f"s_lshr_b32 s{sTmp}, s2, 5")
    g(f"s_lshl3_add_u32 s{sGrp}, s{sTmp}, s{sGrp}")
    g(f"s_and_b32 s{sTmp}, s2, 24")
    g(f"s_lshl_b32 s{sKo}, s{sGrp}, 21")
    g(f"s_lshl_b32 s{sTmp}, s{sTmp}, 11")
    g(f"s_or_b32 s{sKo}, s{sKo}, s{sTmp}")
    g(f"s_brev_b32 s{sK+2}, 16                     ; 128 MiB")
    g(f"s_lshl_b32 s{sK+3}, 1, 17                  ; 0x20000")
    g.c("lane l = 16g + 4a + b.  K: key a, bytes 64g+16b of the row.  Q: head b, bytes 64g+16a.  V: linear")
    g(f"v_readfirstlane_b32 s{sWave}, v0")
    g(f"v_and_b32 v{vT0}, 3, v0")
    g(f"v_and_b32 v{vT1}, 0xcc, v0")
    g(f"v_and_b32 v{vA}, 48, v0")
    g(f"v_lshlrev_b32 v{vKoff}, 4, v{vT0}")
    g(f"v_lshl_or_b32 v{vKoff}, v{vT1}, 6, v{vKoff}")
    g(f"v_lshl_or_b32 v{vKoff}, v{vA}, 2, v{vKoff}")
    g(f"s_cmpk_ge_u32 s{sWave}, 256")
    g("s_cbranch_scc1 L_helper")
    stride = 16 * 4096
    def issue(n):
        p = n % 8
        so, vo, srd = (sKo, vKoff, sK) if p < 4 else (sVo, vVoff, sV)
        g(f"buffer_load_dwordx4 {vr(slot(n),4)}, v{vo}, s[{srd}:{srd+3}], s{so} offen {ldflags}")
        if p % 4 == 3:
            g(f"s_add_u32 s{so}, s{so}, {stride-3072}")
            if tog: g(f"s_xor_b32 s{so}, s{so}, {tog:#x}")
        else:
            g(f"s_addk_i32 s{so}, 1024")
    g("s_waitcnt lgkmcnt(0)")
    g(f"buffer_load_dwordx4 {vr(slot(0),4)}, v{vKoff}, s[{sK}:{sK+3}], s{sKo} offen {ldflags}")
    g(f"s_mov_b32 s{sVo}, s{sKo}")
    g(f"s_addk_i32 s{sKo}, 1024")
    g(f"s_lshr_b32 s{sWave}, s{sWave}, 6")
    g(f"v_bfe_u32 v{vT1}, v0, 2, 2")
    g(f"v_lshlrev_b32 v{vMcN}, 8, v{vT0}")
    g(f"v_lshl_or_b32 v{vMcN}, v{vT1}, 4, v{vMcN}")
    g(f"v_lshl_or_b32 v{vMcN}, v{vA}, 2, v{vMcN}")
    g(f"s_lshl_b32 s{sTmp2}, s{sGrp}, 10")
    g(f"s_mov_b32 s{sQ+2}, 0x10000")
    g(f"s_mov_b32 s{sQ+3}, s{sK+3}")
    g(f"buffer_load_dwordx4 {vr(vQ,4)}, v{vMcN}, s[{sQ}:{sQ+3}], s{sTmp2} offen")
    g(f"v_and_b32 v{vLane16}, 63, v0")
    issue(1)
    g(f"v_and_b32 v{vVoff}, 0xc0, v0")
    issue(2)
    g(f"v_lshlrev_b32 v{vLane16}, 4, v{vLane16}       ; lane*16")
    issue(3)
    g(f"v_lshl_or_b32 v{vVoff}, v{vVoff}, 6, v{vLane16}")
    g(f"s_mov_b32 s{sV+2}, s{sK+2}")
    g(f"s_mov_b32 s{sV+3}, s{sK+3}")
    for n in range(4, A):
        issue(n)
    g("s_load_dwordx2 s[10:11], s[0:1], 24          ; out")
    g("s_load_dwordx4 s[12:15], s[0:1], 32")
    if cpf:
        g.c("pull this kernel's own code into L2 early")
        g(f"s_getpc_b64 s[{sCp}:{sCp+1}]")
        g.lab("L_pc")
        g(f"s_sub_u32 s{sCp}, s{sCp}, L_pc-{NAME}_kernel")
        g(f"s_subb_u32 s{sCp+1}, s{sCp+1}, 0")
        g(f"s_mov_b32 s{sCp+2}, L_codeend-{NAME}_kernel")
        g(f"s_mov_b32 s{sCp+3}, 0x20000")
        g(f"v_lshlrev_b32 v{vM}, 4, v0")
        g(f"buffer_load_dwordx4 {vr(slot(12),4)}, v{vM}, s[{sCp}:{sCp+3}], 0 offen")
    g(f"s_mov_b32 s{sC}, {f2u(cscale):#x}           ; D^-0.5 * log2(e)")
    g(f"v_mov_b32 v{vM}, 0xff800000")
    g(f"v_mov_b32 v{vMc}, v{vM}")
    g(f"v_mov_b32 v{vL}, 0")
    for r in range(8):
        g(f"v_mov_b32 v{vO+r}, 0")
    for r in range(18):
        g(f"v_mov_b32 v{vB+r}, 0")
    for r in range(8):
        g(f"v_mov_b32 v{slot(14)+r}, 0")
    g.c("P placement masks: column group a selects bf16 slot a of the B fragment")
    g(f"v_and_b32 v{vT0}, 1, v{vT1}")
    g(f"v_lshlrev_b32 v{vT0}, 4, v{vT0}")
    g(f"v_mov_b32 v{vA}, 0xffff")
    g(f"v_lshlrev_b32 v{vA}, v{vT0}, v{vA}")
    g(f"v_cmp_gt_u32 vcc, 2, v{vT1}")
    g(f"s_mov_b32 s{sIt}, {T//2}")
    g(f"s_mov_b32 s{sChk}, 0")
    g(f"v_cndmask_b32 v{vMask0}, 0, v{vA}, vcc")
    g(f"v_cndmask_b32 v{vMask1}, v{vA}, 0, vcc")
    if stamps:
        g(f"s_waitcnt vmcnt({A-1})")
        g(f"s_memrealtime s[{sT0+2}:{sT0+3}]")
    def QK(m):
        i = m % 8
        g(f"v_mfma_f32_16x16x32_bf16 {vr(S(i,0),4)}, {vr(slot(m),4)}, {vr(vQ,4)}, 0")
    def PV(mv):
        i = mv % 8 - 4
        g(f"v_mfma_f32_16x16x32_bf16 {vr(vO,4)}, {vr(slot(mv),4)}, {vr(X(i),4)}, {vr(vO,4)}")
        g(f"v_mfma_f32_16x16x32_bf16 {vr(vO+4,4)}, {vr(slot(mv),4)}, {vr(X(i)-2,4)}, {vr(vO+4,4)}")
    def SMA(nop=3):
        g(f"s_nop {nop}")
        for i in range(4):
            g(f"v_add_f32_dpp v{S(i,1)}, v{S(i,2)}, v{S(i,0)} row_ror:8 row_mask:0xf bank_mask:0x1")
        for i in range(4):
            g(f"v_add_f32_dpp v{S(i,1)}, v{S(i,0)}, v{S(i,2)} row_ror:8 row_mask:0xf bank_mask:0x4")
        for i in range(4):
            g(f"v_add_f32_dpp v{S(i,1)}, v{S(i,1)}, v{S(i,3)} row_ror:8 row_mask:0xf bank_mask:0x8")
        for i in range(4):
            g(f"v_add_f32_dpp v{S(i,1)}, v{S(i,3)}, v{S(i,1)} row_ror:8 row_mask:0xf bank_mask:0x2")
        for i in range(4):
            g(f"v_add_f32_dpp v{S(i,0)}, v{S(i,1)}, v{S(i,1)} row_ror:4 row_mask:0xf bank_mask:0xf")
    def SMB():
        g(f"v_max3_f32 v{vT0}, v{S(0,0)}, v{S(1,0)}, v{S(2,0)}")
        g(f"v_max3_f32 v{vT0}, v{vT0}, v{S(3,0)}, v{vM}")
        g(f"v_mov_b32 v{vT1}, v{vT0}")
        g("s_nop 1")
        g(f"v_permlane32_swap_b32 v{vT0}, v{vT1}")
        g("s_nop 1")
        g(f"v_max_f32 v{vT0}, v{vT0}, v{vT1}")
        g(f"v_mov_b32 v{vT1}, v{vT0}")
        g("s_nop 1")
        g(f"v_permlane16_swap_b32 v{vT0}, v{vT1}")
        g("s_nop 1")
        g(f"v_max_f32 v{vM}, v{vT0}, v{vT1}")
        g(f"v_mul_f32 v{vMcN}, s{sC}, v{vM}")
        g(f"v_sub_f32 v{vA}, v{vMc}, v{vMcN}")
        g(f"v_exp_f32 v{vA}, v{vA}")
        for i in range(4):
            g(f"v_fma_f32 v{S(i,0)}, v{S(i,0)}, s{sC}, -v{vMcN}")
        for i in range(4):
            g(f"v_exp_f32 v{S(i,0)}, v{S(i,0)}")
        g(f"v_mov_b32 v{vMc}, v{vMcN}")
    def SMC():
        for r in range(8):
            g(f"v_mul_f32 v{vO+r}, v{vO+r}, v{vA}")
        for i in range(4):
            g(f"v_cvt_pk_bf16_f32 v{S(i,1)}, v{S(i,0)}, v{S(i,0)}")
        for i in range(4):
            g(f"v_and_b32 v{X(i)}, v{S(i,1)}, v{vMask0}")
            g(f"v_and_b32 v{X(i)+1}, v{S(i,1)}, v{vMask1}")
        g(f"v_fma_f32 v{vL}, v{vL}, v{vA}, v{S(0,0)}")
        g(f"v_add_f32 v{S(1,0)}, v{S(1,0)}, v{S(2,0)}")
        g(f"v_add_f32 v{vL}, v{vL}, v{S(3,0)}")
        g(f"v_add_f32 v{vL}, v{vL}, v{S(1,0)}")
    def compute(m):
        p = m % 8
        if p < 4: QK(m)
        if p in (0, 1): PV(m - 2 + 16)
        if p == 4: SMA()
        if p == 5: SMB()
        if p == 6: SMC(); PV(m - 2)
        if p == 7: PV(m - 2)
    if not tau:
        g.lab("L_loop")
        for m in range(16):
            g(f"s_waitcnt vmcnt({waits[m % len(waits)]})")
            issue(m + A)
            compute(m)
        g(f"s_sub_u32 s{sIt}, s{sIt}, 1")
        g(f"s_cmp_lg_u32 s{sIt}, 1")
        g("s_cbranch_scc1 L_loop")
    else:
        if org1:
            g(f"s_waitcnt vmcnt({A-1})")
            g(f"s_memrealtime s[{sNow}:{sNow+1}]")
        g("s_waitcnt lgkmcnt(0)")
        g(f"s_add_u32 s{sTg}, s{sNow}, {t00 & 0xffffffff}")
        def body(name, ws_):
            g.lab(name)
            for m in range(16):
                if m == 14:
                    g(f"s_memrealtime s[{sNow}:{sNow+1}]")
                g(f"s_waitcnt vmcnt({ws_[m % len(ws_)]})")
                issue(m + A)
                compute(m)
            g(f"s_sub_u32 s{sIt}, s{sIt}, 1")
            g(f"s_cmp_eq_u32 s{sIt}, 1")
            g("s_cbranch_scc1 L_last")
            g(f"s_add_u32 s{sTg}, s{sTg}, {tau}")
            g("s_waitcnt lgkmcnt(0)")
            g(f"s_sub_u32 s{sTmp}, s{sNow}, s{sTg}")
            g(f"s_cmp_gt_i32 s{sTmp}, 0")
        body("L_loop", wlo)
        g("s_cbranch_scc0 L_loop")
        body("L_loopB", whi)
        g("s_cbranch_scc1 L_loopB")
        g("s_branch L_loop")
        g.lab("L_last")
    g.c("last two tiles: every remaining load goes out as soon as its registers are free")
    issued = A
    for n in range(A, 14):
        issue(n); issued = n + 1
    def tail_setup(helper=False):
        g.c("everything the tail needs (all loads are in flight meanwhile)")
        g("s_waitcnt lgkmcnt(0)")
        g(f"s_lshl_b32 s{sTmp}, s{sGrp}, 2")
        g(f"s_add_u32 s{sDp}, s12, s{sTmp}")
        g(f"s_addc_u32 s{sDp+1}, s13, 0")
        if chkit == 8 and not helper:
            g(f"s_load_dword s{sChk}, s[{sDp}:{sDp+1}], 0x0")
        g(f"s_mov_b32 s{sW}, s14")
        g(f"s_mov_b32 s{sW+1}, s15")
        g(f"s_mov_b32 s{sW+2}, {STBASE + (NWG*NW*64 if stamps else 0)}")
        g(f"s_mov_b32 s{sW+3}, 0x20000")
        g(f"s_add_u32 s{sOut}, s10, s{sTmp2}")
        g(f"s_addc_u32 s{sOut+1}, s11, 0")
        g(f"s_movk_i32 s{sOut+2}, 1024")
        g(f"s_mov_b32 s{sOut+3}, 0x20000")
        g(f"s_mov_b32 s{sDv}, s12")
        g(f"s_mov_b32 s{sDv+1}, s13")
        g(f"s_movk_i32 s{sDv+2}, 256")
        g(f"s_mov_b32 s{sDv+3}, 0x20000")
        g(f"s_lshl_b32 s{sSl}, s2, 12")
        for k in (1, 2, 3):
            g(f"s_xor_b32 s{sSl+k}, s{sSl}, {k*8*4096}")
        g.c("counter word expected when all four workgroups checked in from THIS XCC: 4 << (3*xcc); ids > 7 never match")
        g(f"s_getreg_b32 s{sExp}, hwreg(HW_REG_XCC_ID, 0, 4)")
        g(f"s_mul_i32 s{sTmp}, s{sExp}, 3")
        g(f"s_lshl_b32 s{sTmp}, 4, s{sTmp}")
        g(f"s_cmp_gt_u32 s{sExp}, 7")
        g(f"s_cselect_b32 s{sExp}, -1, s{sTmp}")
        if forcefb:
            g(f"s_mov_b32 s{sExp}, -1")
        g(f"v_lshlrev_b32 v{vOo}, 3, v0")
        g(f"v_bfe_u32 v{vLH}, v0, 1, 2")
        g(f"s_lshl_b32 s{sTmp}, s{sWave}, 5")
        g(f"v_lshl_add_u32 v{vMo}, v{vLH}, 3, s{sTmp}")
        g(f"v_lshlrev_b32 v{vOutA}, 8, v{vLH}")
        g(f"v_lshlrev_b32 v{vLH}, 5, v{vLH}")
        g(f"v_bfe_u32 v{vZero}, v0, 5, 2")
        g(f"v_lshl_add_u32 v{vOutA}, v{vZero}, 6, v{vOutA}")
        g(f"v_and_b32 v{vZero}, 1, v0")
        g(f"v_lshl_add_u32 v{vOutA}, v{vZero}, 5, v{vOutA}")
        g(f"v_bfe_u32 v{vZero}, v0, 7, 1")
        g(f"v_lshl_add_u32 v{vOutA}, v{vZero}, 3, v{vOutA}")
        g(f"v_bfe_u32 v{vZero}, v0, 3, 2")
        g(f"v_lshl_add_u32 v{vOutA}, v{vZero}, 1, v{vOutA}")
        g(f"v_mov_b32 v{vZero}, 0")
        g(f"s_lshl_b32 s{sTmp}, s{sWave}, 11")
        g(f"v_add_u32 v{vLO}, s{sTmp}, v{vLane16}")
        g(f"s_lshl_b32 s{sTmp}, s{sWave}, 3")
        g(f"v_lshl_add_u32 v{vLM}, v{vLane16}, 1, s{sTmp}")
        g(f"s_lshl_b32 s{sTmp}, s{sWave}, 2")
        g(f"v_mov_b32 v{vLK}, s{sTmp}")

    tail_setup()
    g.L.append("; WARM_BEGIN")
    def w(m): g(f"s_waitcnt vmcnt({issued - 1 - m})")
    for m in (0, 1):
        w(m); QK(m); PV(m + 14); issue(14 + m); issued = 15 + m
    for m in (2, 3):
        w(m); QK(m)
    SMA(4); SMB(); SMC()
    for m in (4, 5, 6, 7):
        w(m); PV(m)
    for m in (8, 9, 10, 11):
        w(m); QK(m)
    SMA(4); SMB(); SMC()
    g.c("row sums across the four key groups; publish (max, sum) and this wave's view of the counter to LDS")
    g(f"v_mov_b32 v{vT1}, v{vL}")
    g("s_waitcnt lgkmcnt(0)")
    g(f"s_and_b32 s{sChk}, s{sChk}, 0xffffff")
    g(f"v_permlane32_swap_b32 v{vL}, v{vT1}")
    g(f"s_cmp_eq_u32 s{sChk}, s{sExp}")
    g(f"s_cselect_b32 s{sOK}, 1, 0")
    g(f"v_add_f32 v{vL}, v{vL}, v{vT1}")
    g(f"v_mov_b32 v{vT1}, v{vL}")
    g(f"v_mov_b32 v{vM}, s{sOK}")
    g("s_nop 0")
    g(f"v_permlane16_swap_b32 v{vL}, v{vT1}")
    g("s_nop 1")
    g(f"v_add_f32 v{vL}, v{vL}, v{vT1}")
    g("s_mov_b64 exec, 0xf")
    g(f"ds_write_b64 v{vLM}, {vr(vMc,2)} offset:{LDS_ML}")
    g(f"ds_write_b32 v{vLK}, v{vM} offset:{LDS_OK}")
    g("s_mov_b64 exec, -1")
    g("s_nop 3")
    for m in (12, 13, 14, 15):
        w(m); PV(m)
    if stamps:
        g(f"s_memrealtime s[{sT0+4}:{sT0+5}]")
    def round_loads(extra=0):
        for k in (1, 2, 3):
            so = f"s{sSl+k}"
            if extra:
                g(f"s_add_u32 s{sTmp}, s{sSl+k}, {extra}"); so = f"s{sTmp}"
            g(f"buffer_load_dwordx2 {vr(vR+4*(k-1),2)}, v{vOo}, s[{sW}:{sW+3}], {so} offen sc1")
            g(f"buffer_load_dwordx2 {vr(vR+4*(k-1)+2,2)}, v{vMo}, s[{sW}:{sW+3}], {so} offen offset:2048 sc1")
    def publish(flags="", extra=0):
        so = f"s{sSl}"
        if extra:
            g(f"s_add_u32 s{sTmp}, s{sSl}, {extra}"); so = f"s{sTmp}"
        g(f"buffer_store_dwordx2 {vr(vP,2)}, v{vOo}, s[{sW}:{sW+3}], {so} offen {flags}")
        g("s_mov_b64 exec, 0x55")
        g(f"buffer_store_dwordx2 {vr(vP+2,2)}, v{vMo}, s[{sW}:{sW+3}], {so} offen offset:2048 {flags}")
        g("s_mov_b64 exec, -1")
    def round_check(target_ok):
        g(f"v_max3_u32 v{vT0}, v{vR}, v{vR+1}, v{vR+2}")
        g(f"v_max3_u32 v{vT1}, v{vR+3}, v{vR+4}, v{vR+5}")
        g(f"v_max3_u32 v{vT0}, v{vT0}, v{vR+6}, v{vR+7}")
        g(f"v_max3_u32 v{vT1}, v{vT1}, v{vR+8}, v{vR+9}")
        g(f"v_max3_u32 v{vT0}, v{vT0}, v{vR+10}, v{vR+11}")
        g(f"v_max_u32 v{vT0}, v{vT0}, v{vT1}")
        g(f"v_cmp_eq_u32 vcc, -1, v{vT0}")
        g(f"s_cbranch_vccz {target_ok}")
    g(f"s_cmp_eq_u32 s{sOK}, 0")
    g("s_cbranch_scc1 L_noearly")
    g.c("early look at the other three partials (valid: all four slots were marked empty before)")
    round_loads()
    g("s_branch L_wr")
    g.lab("L_noearly")
    g("s_nop 7")
    g.lab("L_wr")
    g(f"ds_write_b128 v{vLO}, {vr(vO,4)}")
    g(f"ds_write_b128 v{vLO}, {vr(vO+4,4)} offset:1024")
    vML = vB; vOw = vB + 8; vOKs = vQ
    g("s_waitcnt lgkmcnt(0)")
    g("s_barrier")
    g(f"ds_read_b128 {vr(vML,4)}, v{vLH} offset:{LDS_ML}")
    g(f"ds_read_b128 {vr(vML+4,4)}, v{vLH} offset:{LDS_ML+16}")
    g(f"ds_read_b128 {vr(vOKs,4)}, v{vZero} offset:{LDS_OK}")
    for wv in range(NW):
        g(f"ds_read_b64 {vr(vOw+2*wv,2)}, v{vOo} offset:{wv*2048}")
    g(f"s_mov_b32 s{sTmp}, 0xfffffffe")
    g("s_waitcnt lgkmcnt(4)")
    g(f"v_max_f32 v{vP+2}, v{vML}, v{vML+2}")
    g(f"v_and_b32 v{vOKs}, v{vOKs}, v{vOKs+1}")
    g(f"v_max3_f32 v{vP+2}, v{vP+2}, v{vML+4}, v{vML+6}")
    g(f"v_and_b32 v{vOKs+2}, v{vOKs+2}, v{vOKs+3}")
    for wv in range(NW):
        g(f"v_sub_f32 v{vML+2*wv}, v{vML+2*wv}, v{vP+2}")
    g(f"v_and_b32 v{vOKs}, v{vOKs}, v{vOKs+2}")
    for wv in range(NW):
        g(f"v_exp_f32 v{vML+2*wv}, v{vML+2*wv}")
    g(f"v_readfirstlane_b32 s{sOK}, v{vOKs}")
    g(f"v_mul_f32 v{vP+3}, v{vML}, v{vML+1}")
    for wv in range(1, NW):
        g(f"v_fmac_f32 v{vP+3}, v{vML+2*wv}, v{vML+2*wv+1}")
    g("s_waitcnt lgkmcnt(0)")
    g(f"v_mul_f32 v{vP}, v{vML}, v{vOw}")
    g(f"v_mul_f32 v{vP+1}, v{vML}, v{vOw+1}")
    for wv in range(1, NW):
        g(f"v_fmac_f32 v{vP}, v{vML+2*wv}, v{vOw+2*wv}")
        g(f"v_fmac_f32 v{vP+1}, v{vML+2*wv}, v{vOw+2*wv+1}")
    for r in (2, 3, 0, 1):
        g(f"v_min_u32 v{vP+r}, s{sTmp}, v{vP+r}")
    g(f"s_cmp_eq_u32 s{sOK}, 0")
    g("s_cbranch_scc1 L_slow")
    g("s_waitcnt vmcnt(0)")
    round_check("L_final")
    publish()
    round_loads()
    g("s_waitcnt vmcnt(0)")
    round_check("L_final")
    g.lab("L_round2")
    g.c("own partial is visible now: if another one is still missing, its owner will see ours and finish the job")
    round_loads()
    g("s_waitcnt vmcnt(0)")
    round_check("L_final")
    g("s_branch L_fin")
    g.lab("L_slow")
    g.c("placement unknown or different XCCs: publish in both regions, then one returning atomic decides")
    publish()
    publish("sc1", R2)
    g("s_waitcnt vmcnt(0)")
    g("s_barrier")
    g(f"s_cmp_lg_u32 s{sWave}, 0")
    g("s_cbranch_scc1 L_noatom")
    g("s_mov_b64 exec, 1")
    g(f"v_mov_b32 v{vT0}, 0x1000000")
    g(f"s_lshl_b32 s{sTmp}, s{sGrp}, 2")
    g(f"buffer_atomic_add v{vT0}, v{vZero}, s[{sDv}:{sDv+3}], s{sTmp} offen sc0")
    g("s_waitcnt vmcnt(0)")
    g(f"ds_write_b32 v{vZero}, v{vT0} offset:{LDS_FLAG}")
    g("s_mov_b64 exec, -1")
    g("s_waitcnt lgkmcnt(0)")
    g.lab("L_noatom")
    g("s_barrier")
    g(f"ds_read_b32 v{vT0}, v{vZero} offset:{LDS_FLAG}")
    g("s_waitcnt lgkmcnt(0)")
    g(f"v_readfirstlane_b32 s{sChk}, v{vT0}")
    g("s_nop 3")
    g(f"s_and_b32 s{sTmp}, s{sChk}, 0xffffff")
    g(f"s_cmp_eq_u32 s{sTmp}, s{sExp}")
    g("s_cbranch_scc1 L_round2")
    g(f"s_lshr_b32 s{sTmp}, s{sChk}, 24")
    g(f"s_cmp_lg_u32 s{sTmp}, 3")
    g("s_cbranch_scc1 L_fin")
    round_loads(R2)
    g("s_waitcnt vmcnt(0)")
    g.lab("L_final")
    R = lambda k, r: (vP + r) if k == 0 else (vR + 4 * (k - 1) + r)
    g(f"v_max_f32 v{vMc}, v{R(0,2)}, v{R(1,2)}")
    g(f"v_max3_f32 v{vMc}, v{vMc}, v{R(2,2)}, v{R(3,2)}")
    for k in range(4):
        g(f"v_sub_f32 v{R(k,2)}, v{R(k,2)}, v{vMc}")
    for k in range(4):
        g(f"v_exp_f32 v{R(k,2)}, v{R(k,2)}")
    g("s_nop 0")
    for r in (3, 0, 1):
        for k in range(4):
            g(f"v_mul_f32 v{R(k,r)}, v{R(k,r)}, v{R(k,2)}")
    for r in (3, 0, 1):
        g(f"v_add_f32 v{R(0,r)}, v{R(0,r)}, v{R(1,r)}")
        g(f"v_add_f32 v{R(2,r)}, v{R(2,r)}, v{R(3,r)}")
    g(f"v_add_f32 v{R(0,3)}, v{R(0,3)}, v{R(2,3)}")
    g(f"v_rcp_f32 v{vL}, v{R(0,3)}")
    g(f"v_add_f32 v{R(0,0)}, v{R(0,0)}, v{R(2,0)}")
    g(f"v_add_f32 v{R(0,1)}, v{R(0,1)}, v{R(2,1)}")
    g(f"v_mul_f32 v{R(0,0)}, v{R(0,0)}, v{vL}")
    g(f"v_mul_f32 v{R(0,1)}, v{R(0,1)}, v{vL}")
    g(f"v_cvt_pk_bf16_f32 v{R(0,0)}, v{R(0,0)}, v{R(0,1)}")
    g(f"buffer_store_short v{R(0,0)}, v{vOutA}, s[{sOut}:{sOut+3}], 0 offen")
    g(f"buffer_store_short_d16_hi v{R(0,0)}, v{vOutA}, s[{sOut}:{sOut+3}], 0 offen offset:16")
    g.L.append("; WARM_END")
    g.lab("L_fin")
    if stamps:
        g(f"s_memrealtime s[{sT0+6}:{sT0+7}]")
        g(f"s_getreg_b32 s{sT0+8}, hwreg(HW_REG_XCC_ID)")
        g(f"s_mov_b32 s{sT0+9}, s{sOK}")
        g("s_waitcnt lgkmcnt(0)")
        g(f"s_mul_i32 s{sTmp}, s2, {NW}")
        g(f"s_add_u32 s{sTmp}, s{sTmp}, s{sWave}")
        g(f"s_lshl_b32 s{sTmp}, s{sTmp}, 6")
        g(f"s_add_u32 s{sTmp}, s{sTmp}, {STBASE}")
        g("s_mov_b64 exec, 1")
        for j in range(10):
            g(f"v_mov_b32 v{vKV+j}, s{sT0+j}")
        g(f"v_mov_b32 v{vKV+12}, 0")
        g(f"buffer_store_dwordx4 {vr(vKV,4)}, v{vKV+12}, s[{sW}:{sW+3}], s{sTmp} offen")
        g(f"buffer_store_dwordx4 {vr(vKV+4,4)}, v{vKV+12}, s[{sW}:{sW+3}], s{sTmp} offen offset:16")
        g(f"buffer_store_dwordx2 {vr(vKV+8,2)}, v{vKV+12}, s[{sW}:{sW+3}], s{sTmp} offen offset:32")
    g.lab("L_done")
    g("s_endpgm")
    g.lab("L_helper")
    g.c("helper wave: mark this workgroup's partial slot as empty, then count this workgroup (and its XCC) in")
    g("s_load_dwordx4 s[12:15], s[0:1], 32")
    g(f"s_getreg_b32 s{sExp}, hwreg(HW_REG_XCC_ID, 0, 4)")
    g(f"v_and_b32 v{vVoff}, 63, v0")
    g(f"v_lshlrev_b32 v{vVoff}, 4, v{vVoff}")
    for r in range(4):
        g(f"v_mov_b32 v{vS+r}, -1")
    g(f"s_cmp_gt_u32 s{sExp}, 7")
    g("s_cbranch_scc1 L_done")
    g(f"s_mul_i32 s{sExp}, s{sExp}, 3")
    g(f"s_lshl_b32 s{sExp}, 1, s{sExp}")
    g(f"s_lshl_b32 s{sTmp}, s{sGrp}, 2")
    g(f"s_lshl_b32 s{sSl}, s2, 12")
    g(f"s_mov_b32 s{sW+2}, {STBASE}")
    g(f"s_mov_b32 s{sW+3}, 0x20000")
    g("s_waitcnt lgkmcnt(0)")
    g(f"s_mov_b32 s{sW}, s14")
    g(f"s_mov_b32 s{sW+1}, s15")
    for wv in range(2):
        g(f"buffer_store_dwordx4 {vr(vS,4)}, v{vVoff}, s[{sW}:{sW+3}], s{sSl} offen offset:{wv*1024}")
    g("s_mov_b64 exec, 0xff")
    g(f"buffer_store_dwordx4 {vr(vS,4)}, v{vVoff}, s[{sW}:{sW+3}], s{sSl} offen offset:2048")
    g(f"s_add_u32 s{sDp}, s12, s{sTmp}")
    g(f"s_addc_u32 s{sDp+1}, s13, 0")
    g("s_waitcnt vmcnt(0)")
    g(f"s_atomic_add s{sExp}, s[{sDp}:{sDp+1}], 0x0")
    if warm:
        g.c("then walk the tail code (one branch per cache line, no lane active) so it is in the instruction cache")
        g("s_waitcnt lgkmcnt(0)")
        g("s_mov_b64 exec, -1")
        g(f"s_lshl_b32 s{sTmp}, s{sGrp}, 21")
        g(f"s_add_u32 s{sK}, s6, s{sTmp}")
        g(f"s_addc_u32 s{sK+1}, s7, 0")
        g(f"s_add_u32 s{sV}, s8, s{sTmp}")
        g(f"s_addc_u32 s{sV+1}, s9, 0")
        tail_setup(True)
        g("s_mov_b64 exec, 0")
        g("s_branch L_hop0")
    else:
        g("s_endpgm")
    g.lab("L_codeend")
    g.L.append('.section .rodata,"a"')
    g.L.append(".p2align 6")
    g.L.append(f".amdhsa_kernel {NAME}_kernel")
    g.L.append(f"  .amdhsa_next_free_vgpr {nv}")
    g.L.append(f"  .amdhsa_next_free_sgpr 76")
    g.L.append(f"  .amdhsa_accum_offset {(nv+3)//4*4}")
    g.L.append("  .amdhsa_group_segment_fixed_size 0")
    g.L.append("  .amdhsa_kernarg_size 48")
    g.L.append("  .amdhsa_user_sgpr_count 2")
    g.L.append("  .amdhsa_user_sgpr_kernarg_segment_ptr 1")
    g.L.append("  .amdhsa_system_sgpr_workgroup_id_x 1")
    g.L.append(".end_amdhsa_kernel")
    if warm:
        return add_hops(g.L, warm)
    return g.text()

def add_hops(L, spacing):
    import subprocess, re
    L = "\n".join(L).split("\n")
    def is_insn(l):
        t = l.strip()
        return bool(t) and not t.startswith(";") and not t.startswith(".") and not t.endswith(":")
    tmp = [l if "L_hop0" not in l else "    s_branch L_done" for l in L]
    open("hop.s", "w").write("\n".join(tmp) + "\n")
    subprocess.run(["clang", "-x", "assembler", "-target", "amdgcn-amd-amdhsa", "-mcpu=gfx950", "-c", "hop.s", "-o", "hop.o"], check=True)
    d = subprocess.run(["llvm-objdump", "-d", "--mcpu=gfx950", "hop.o"], capture_output=True, text=True).stdout
    sizes = [4 * len(m.group(1).split()) for m in re.finditer(r"// [0-9A-F]{12}: ([0-9A-F ]+)$", d, re.M)]
    out = []; k = 0; inside = False; since = None; nh = 0
    txt_end = [i for i, l in enumerate(L) if l.startswith(".section")][0]
    for i, l in enumerate(L):
        if l.startswith("; WARM_BEGIN"):
            inside = True; since = 1 << 30; continue
        if l.startswith("; WARM_END"):
            inside = False
            out.append(f"L_hop{nh}:"); out.append("    s_cbranch_execz L_done"); continue
        if i < txt_end and is_insn(l):
            sz = sizes[k]; k += 1
            if inside:
                if since + sz > spacing:
                    out.append(f"L_hop{nh}:"); out.append(f"    s_cbranch_execz L_hop{nh+1}"); nh += 1; since = 4
                since += sz
        out.append(l)
    assert k == len(sizes), (k, len(sizes))
    return "\n".join(out) + "\n"

if __name__ == "__main__":
    ap = argparse.ArgumentParser()
    ap.add_argument("-o", default="cdna_kernels/" + NAME + ".s")
    ap.add_argument("--a", type=int, default=5)
    ap.add_argument("--waits", default="4")
    ap.add_argument("--ld", default="nt")
    ap.add_argument("--stamps", action="store_true")
    ap.add_argument("--forcefb", action="store_true")
    ap.add_argument("--chkit", type=int, default=8)
    ap.add_argument("--tog", type=lambda x: int(x, 0), default=0xc000)
    ap.add_argument("--cpf", action="store_true")
    ap.add_argument("--warm", type=int, default=0)
    ap.add_argument("--flat", action="store_true")
    ap.add_argument("--noimm", action="store_true")
    ap.add_argument("--tau", type=int, default=0)
    ap.add_argument("--t00", type=int, default=70)
    ap.add_argument("--wlo", default="4")
    ap.add_argument("--whi", default="5")
    ap.add_argument("--org1", action="store_true")
    a = ap.parse_args()
    w = [int(x) for x in a.waits.split(",")]
    open(a.o, "w").write(gen(a.a, w, a.ld.replace("_", " ").replace("none", ""), a.stamps, a.forcefb, a.chkit, a.tog, a.cpf, a.warm, a.flat, a.noimm, a.tau, a.t00, [int(x) for x in a.wlo.split(",")], [int(x) for x in a.whi.split(",")], a.org1))
```

```python
import sys, math, argparse
from gen import HDR, NAME, G, vr, f2u

def gen(A=6, waits=(4, 4, 4, 5), ldflags="nt", stamps=False, forcefb=False, chkit=8, tog=0xc000, cpf=False, warm=0, flat=False, noimm=False, tau=0, t00=95, wlo=None, whi=None, org1=False, selfcal=False, dtau=0, dl=0, anchors=(1,5,9)):
    g = G()
    NW = 4; NSPLIT = 4; NG = 64
    NWG = NG * NSPLIT
    T = 32
    GB = 2 << 20
    NT = 320
    LDS_ML = NW * 2048
    LDS_OK = LDS_ML + 4 * NW * 8
    LDS_FLAG = LDS_OK + 16
    LDS = LDS_FLAG + 16
    cscale = (128 ** -0.5) * math.log2(math.e)
    assert all(w <= A - 1 for w in waits) and A <= 12
    R2 = NWG * 4096
    STBASE = 2 * NWG * 4096

    vKoff = 1; vVoff = 2; vM = 3; vMc = 4; vL = 5; vMask0 = 6; vMask1 = 7
    vT0 = 8; vT1 = 9; vA = 10; vMcN = 11
    vQ = 12; vO = 16; vS = 24; vB = 40; vKV = 58
    vR = vS; vP = vS + 12
    e = vKV + 64
    vOo = e; vMo = e + 1; vOutA = e + 2; vLO = e + 3; vLM = e + 4; vLH = e + 5; vLK = e + 6; vZero = e + 7; vLane16 = e + 8
    nv = e + 9
    def slot(n): return vKV + (n % 16) * 4
    def X(i): return vB + 2 + 4 * i
    S = lambda i, r: vS + 4 * i + r

    sK = 16; sV = 20; sQ = 24; sW = 28; sOut = 32; sDv = 36
    sGrp = 40; sSplit = 41; sWave = 42; sKo = 43; sVo = 44; sC = 45; sIt = 46; sTmp = 47; sTmp2 = 48; sChk = 49
    sT0 = 50
    sDp = 60; sSl = 62; sOK = 67; sExp = 68; sCp = 4; sNow = 70; sTg = 72; sTau = 73; sLn = 74; sRep = 75; sMp = 76; sAcc = 77; sMx = 78; sPw = 79; sLv = 80; sTmp2x = 88

    g.L.append(HDR.rstrip())
    if stamps: g.L.append(f"; STAMPBASE {STBASE}")
    g.L.append(f"; @launch grid=({NWG},1,1) block=({NT},1,1) lds={LDS}")
    g.L.append('.amdgcn_target "amdgcn-amd-amdhsa--gfx950"')
    g.L.append(".text")
    g.L.append(f".globl {NAME}_kernel")
    g.L.append(".p2align 8")
    g.L.append(f".type {NAME}_kernel,@function")
    g.lab(f"{NAME}_kernel")
    if stamps:
        g(f"s_memrealtime s[{sT0}:{sT0+1}]")
    g(f"s_cmpk_ge_u32 s2, {NWG}")
    g("s_cbranch_scc1 L_done")
    g(f"s_load_dwordx2 s[{sK}:{sK+1}], s[0:1], 8")
    if tau and not org1: g(f"s_memrealtime s[{sNow}:{sNow+1}]")
    g(f"s_load_dwordx2 s[{sV}:{sV+1}], s[0:1], 16")
    g(f"s_load_dwordx2 s[{sQ}:{sQ+1}], s[0:1], 0")
    g.c("wg = 8*jj + x ; split = jj&3 ; group = x + 8*(jj>>2)  (a group's 4 workgroups usually share an XCD: speed only)")
    g.c("byte offset of the first tile: group*2MiB + (4*split + wave)*4KiB  (tile = 16 keys; wave part lives in the VGPR offset)")
    g(f"s_and_b32 s{sGrp}, s2, 7")
    g(f"s_lshr_b32 s{sTmp}, s2, 5")
    g(f"s_lshl3_add_u32 s{sGrp}, s{sTmp}, s{sGrp}")
    g(f"s_and_b32 s{sTmp}, s2, 24")
    g(f"s_lshl_b32 s{sKo}, s{sGrp}, 21")
    g(f"s_lshl_b32 s{sTmp}, s{sTmp}, 11")
    g(f"s_or_b32 s{sKo}, s{sKo}, s{sTmp}")
    g(f"s_brev_b32 s{sK+2}, 16                     ; 128 MiB")
    g(f"s_lshl_b32 s{sK+3}, 1, 17                  ; 0x20000")
    g.c("lane l = 16g + 4a + b.  K: key a, bytes 64g+16b of the row.  Q: head b, bytes 64g+16a.  V: linear")
    g(f"v_readfirstlane_b32 s{sWave}, v0")
    g(f"v_and_b32 v{vT0}, 3, v0")
    g(f"v_and_b32 v{vT1}, 0xcc, v0")
    g(f"v_and_b32 v{vA}, 48, v0")
    g(f"v_lshlrev_b32 v{vKoff}, 4, v{vT0}")
    g(f"v_lshl_or_b32 v{vKoff}, v{vT1}, 6, v{vKoff}")
    g(f"v_lshl_or_b32 v{vKoff}, v{vA}, 2, v{vKoff}")
    g(f"s_cmpk_ge_u32 s{sWave}, 256")
    g("s_cbranch_scc1 L_helper")
    stride = 16 * 4096
    def issue(n):
        p = n % 8
        so, vo, srd = (sKo, vKoff, sK) if p < 4 else (sVo, vVoff, sV)
        g(f"buffer_load_dwordx4 {vr(slot(n),4)}, v{vo}, s[{srd}:{srd+3}], s{so} offen {ldflags}")
        if p % 4 == 3:
            g(f"s_add_u32 s{so}, s{so}, {stride-3072}")
            if tog: g(f"s_xor_b32 s{so}, s{so}, {tog:#x}")
        else:
            g(f"s_addk_i32 s{so}, 1024")
    g("s_waitcnt lgkmcnt(0)")
    g(f"buffer_load_dwordx4 {vr(slot(0),4)}, v{vKoff}, s[{sK}:{sK+3}], s{sKo} offen {ldflags}")
    g(f"s_mov_b32 s{sVo}, s{sKo}")
    g(f"s_addk_i32 s{sKo}, 1024")
    g(f"s_lshr_b32 s{sWave}, s{sWave}, 6")
    g(f"v_bfe_u32 v{vT1}, v0, 2, 2")
    g(f"v_lshlrev_b32 v{vMcN}, 8, v{vT0}")
    g(f"v_lshl_or_b32 v{vMcN}, v{vT1}, 4, v{vMcN}")
    g(f"v_lshl_or_b32 v{vMcN}, v{vA}, 2, v{vMcN}")
    g(f"s_lshl_b32 s{sTmp2}, s{sGrp}, 10")
    g(f"s_mov_b32 s{sQ+2}, 0x10000")
    g(f"s_mov_b32 s{sQ+3}, s{sK+3}")
    g(f"buffer_load_dwordx4 {vr(vQ,4)}, v{vMcN}, s[{sQ}:{sQ+3}], s{sTmp2} offen")
    g(f"v_and_b32 v{vLane16}, 63, v0")
    issue(1)
    g(f"v_and_b32 v{vVoff}, 0xc0, v0")
    issue(2)
    g(f"v_lshlrev_b32 v{vLane16}, 4, v{vLane16}       ; lane*16")
    issue(3)
    g(f"v_lshl_or_b32 v{vVoff}, v{vVoff}, 6, v{vLane16}")
    g(f"s_mov_b32 s{sV+2}, s{sK+2}")
    g(f"s_mov_b32 s{sV+3}, s{sK+3}")
    for n in range(4, A):
        issue(n)
    g("s_load_dwordx2 s[10:11], s[0:1], 24          ; out")
    g("s_load_dwordx4 s[12:15], s[0:1], 32")
    if cpf:
        g.c("pull this kernel's own code into L2 early")
        g(f"s_getpc_b64 s[{sCp}:{sCp+1}]")
        g.lab("L_pc")
        g(f"s_sub_u32 s{sCp}, s{sCp}, L_pc-{NAME}_kernel")
        g(f"s_subb_u32 s{sCp+1}, s{sCp+1}, 0")
        g(f"s_mov_b32 s{sCp+2}, L_codeend-{NAME}_kernel")
        g(f"s_mov_b32 s{sCp+3}, 0x20000")
        g(f"v_lshlrev_b32 v{vM}, 4, v0")
        g(f"buffer_load_dwordx4 {vr(slot(12),4)}, v{vM}, s[{sCp}:{sCp+3}], 0 offen")
    g(f"s_mov_b32 s{sC}, {f2u(cscale):#x}           ; D^-0.5 * log2(e)")
    g(f"v_mov_b32 v{vM}, 0xff800000")
    g(f"v_mov_b32 v{vMc}, v{vM}")
    g(f"v_mov_b32 v{vL}, 0")
    for r in range(8):
        g(f"v_mov_b32 v{vO+r}, 0")
    for r in range(18):
        g(f"v_mov_b32 v{vB+r}, 0")
    for r in range(8):
        g(f"v_mov_b32 v{slot(14)+r}, 0")
    g.c("P placement masks: column group a selects bf16 slot a of the B fragment")
    g(f"v_and_b32 v{vT0}, 1, v{vT1}")
    g(f"v_lshlrev_b32 v{vT0}, 4, v{vT0}")
    g(f"v_mov_b32 v{vA}, 0xffff")
    g(f"v_lshlrev_b32 v{vA}, v{vT0}, v{vA}")
    g(f"v_cmp_gt_u32 vcc, 2, v{vT1}")
    g(f"s_mov_b32 s{sIt}, {T//2}")
    g(f"s_mov_b32 s{sChk}, 0")
    g(f"v_cndmask_b32 v{vMask0}, 0, v{vA}, vcc")
    g(f"v_cndmask_b32 v{vMask1}, v{vA}, 0, vcc")
    if stamps:
        g(f"s_waitcnt vmcnt({A-1})")
        g(f"s_memrealtime s[{sT0+2}:{sT0+3}]")
    def QK(m):
        i = m % 8
        g(f"v_mfma_f32_16x16x32_bf16 {vr(S(i,0),4)}, {vr(slot(m),4)}, {vr(vQ,4)}, 0")
    def PV(mv):
        i = mv % 8 - 4
        g(f"v_mfma_f32_16x16x32_bf16 {vr(vO,4)}, {vr(slot(mv),4)}, {vr(X(i),4)}, {vr(vO,4)}")
        g(f"v_mfma_f32_16x16x32_bf16 {vr(vO+4,4)}, {vr(slot(mv),4)}, {vr(X(i)-2,4)}, {vr(vO+4,4)}")
    def SMA(nop=3):
        g(f"s_nop {nop}")
        for i in range(4):
            g(f"v_add_f32_dpp v{S(i,1)}, v{S(i,2)}, v{S(i,0)} row_ror:8 row_mask:0xf bank_mask:0x1")
        for i in range(4):
            g(f"v_add_f32_dpp v{S(i,1)}, v{S(i,0)}, v{S(i,2)} row_ror:8 row_mask:0xf bank_mask:0x4")
        for i in range(4):
            g(f"v_add_f32_dpp v{S(i,1)}, v{S(i,1)}, v{S(i,3)} row_ror:8 row_mask:0xf bank_mask:0x8")
        for i in range(4):
            g(f"v_add_f32_dpp v{S(i,1)}, v{S(i,3)}, v{S(i,1)} row_ror:8 row_mask:0xf bank_mask:0x2")
        for i in range(4):
            g(f"v_add_f32_dpp v{S(i,0)}, v{S(i,1)}, v{S(i,1)} row_ror:4 row_mask:0xf bank_mask:0xf")
    def SMB():
        g(f"v_max3_f32 v{vT0}, v{S(0,0)}, v{S(1,0)}, v{S(2,0)}")
        g(f"v_max3_f32 v{vT0}, v{vT0}, v{S(3,0)}, v{vM}")
        g(f"v_mov_b32 v{vT1}, v{vT0}")
        g("s_nop 1")
        g(f"v_permlane32_swap_b32 v{vT0}, v{vT1}")
        g("s_nop 1")
        g(f"v_max_f32 v{vT0}, v{vT0}, v{vT1}")
        g(f"v_mov_b32 v{vT1}, v{vT0}")
        g("s_nop 1")
        g(f"v_permlane16_swap_b32 v{vT0}, v{vT1}")
        g("s_nop 1")
        g(f"v_max_f32 v{vM}, v{vT0}, v{vT1}")
        g(f"v_mul_f32 v{vMcN}, s{sC}, v{vM}")
        g(f"v_sub_f32 v{vA}, v{vMc}, v{vMcN}")
        g(f"v_exp_f32 v{vA}, v{vA}")
        for i in range(4):
            g(f"v_fma_f32 v{S(i,0)}, v{S(i,0)}, s{sC}, -v{vMcN}")
        for i in range(4):
            g(f"v_exp_f32 v{S(i,0)}, v{S(i,0)}")
        g(f"v_mov_b32 v{vMc}, v{vMcN}")
    def SMC():
        for r in range(8):
            g(f"v_mul_f32 v{vO+r}, v{vO+r}, v{vA}")
        for i in range(4):
            g(f"v_cvt_pk_bf16_f32 v{S(i,1)}, v{S(i,0)}, v{S(i,0)}")
        for i in range(4):
            g(f"v_and_b32 v{X(i)}, v{S(i,1)}, v{vMask0}")
            g(f"v_and_b32 v{X(i)+1}, v{S(i,1)}, v{vMask1}")
        g(f"v_fma_f32 v{vL}, v{vL}, v{vA}, v{S(0,0)}")
        g(f"v_add_f32 v{S(1,0)}, v{S(1,0)}, v{S(2,0)}")
        g(f"v_add_f32 v{vL}, v{vL}, v{S(3,0)}")
        g(f"v_add_f32 v{vL}, v{vL}, v{S(1,0)}")
    def compute(m):
        p = m % 8
        if p < 4: QK(m)
        if p in (0, 1): PV(m - 2 + 16)
        if p == 4: SMA()
        if p == 5: SMB()
        if p == 6: SMC(); PV(m - 2)
        if p == 7: PV(m - 2)
    if not tau:
        g.lab("L_loop")
        for m in range(16):
            g(f"s_waitcnt vmcnt({waits[m % len(waits)]})")
            issue(m + A)
            compute(m)
        g(f"s_sub_u32 s{sIt}, s{sIt}, 1")
        g(f"s_cmp_lg_u32 s{sIt}, 1")
        g("s_cbranch_scc1 L_loop")
    elif not selfcal:
        if org1:
            g(f"s_waitcnt vmcnt({A-1})")
            g(f"s_memrealtime s[{sNow}:{sNow+1}]")
        g("s_waitcnt lgkmcnt(0)")
        g(f"s_add_u32 s{sTg}, s{sNow}, {t00 & 0xffffffff}")
        def body(name, ws_):
            g.lab(name)
            for m in range(16):
                if m == 14:
                    g(f"s_memrealtime s[{sNow}:{sNow+1}]")
                g(f"s_waitcnt vmcnt({ws_[m % len(ws_)]})")
                issue(m + A)
                compute(m)
            g(f"s_sub_u32 s{sIt}, s{sIt}, 1")
            g(f"s_cmp_eq_u32 s{sIt}, 1")
            g("s_cbranch_scc1 L_last")
            g(f"s_add_u32 s{sTg}, s{sTg}, {tau}")
            g("s_waitcnt lgkmcnt(0)")
            g(f"s_sub_u32 s{sTmp}, s{sNow}, s{sTg}")
            g(f"s_cmp_gt_i32 s{sTmp}, 0")
        body("L_loop", wlo)
        g("s_cbranch_scc0 L_loop")
        body("L_loopB", whi)
        g("s_cbranch_scc1 L_loopB")
        g("s_branch L_loop")
        g.lab("L_last")
    else:
        PACE = 3 << 20
        g("s_waitcnt lgkmcnt(0)")
        g(f"s_add_u32 s{sTg}, s{sNow}, {t00 & 0xffffffff}")
        g(f"s_movk_i32 s{sTau}, {tau}")
        g(f"s_mov_b32 s{sLn}, {PACE - 128}")
        g(f"s_lshl_b32 s{sPw}, s2, 2")
        g(f"s_add_u32 s{sPw}, s{sPw}, {PACE}")
        g(f"s_or_b32 s{sRep}, s{sWave}, s2")
        g(f"s_lshr_b32 s{sTmp}, s2, 3")
        g(f"s_or_b32 s{sRep}, s{sWave}, s{sTmp}")
        g(f"s_mov_b32 s{sMp}, 0")
        def body(name, ws_):
            g.lab(name)
            for m in range(16):
                if m == 14:
                    g(f"s_memrealtime s[{sNow}:{sNow+1}]")
                    g(f"s_load_dwordx8 s[{sLv}:{sLv+7}], s[14:15], s{sLn}")
                g(f"s_waitcnt vmcnt({ws_[m % len(ws_)]})")
                issue(m + A)
                compute(m)
        body("L_loop", wlo)
        g("s_branch L_ctl")
        body("L_loopB", whi)
        g.lab("L_ctl")
        g(f"s_sub_u32 s{sIt}, s{sIt}, 1")
        g(f"s_cmp_eq_u32 s{sIt}, 1")
        g("s_cbranch_scc1 L_last")
        g(f"s_add_u32 s{sTg}, s{sTg}, s{sTau}")
        g(f"s_addk_i32 s{sLn}, 128")
        g("s_waitcnt lgkmcnt(0)")
        g(f"s_cmp_lg_u32 s{sRep}, 0")
        g("s_cbranch_scc1 L_nopub")
        g(f"s_mov_b32 s{sTmp}, s{sNow}")
        g(f"s_atomic_swap s{sTmp}, s[14:15], s{sPw}")
        g(f"s_addk_i32 s{sPw}, 128")
        g.lab("L_nopub")
        a0 = anchors[0]; step = anchors[1] - anchors[0]
        assert all(anchors[i+1]-anchors[i] == step for i in range(len(anchors)-1)) and step in (2, 4)
        g(f"s_and_b32 s{sTmp2x}, s{sIt}, {step-1}")
        g(f"s_cmp_lg_u32 s{sTmp2x}, {(14 - a0) % step}")
        g("s_cbranch_scc1 L_dec")
        g(f"s_cmp_lt_u32 s{sIt}, {14 - anchors[-1]}")
        g("s_cbranch_scc1 L_dec")
        g(f"s_cmp_gt_u32 s{sIt}, {14 - a0}")
        g("s_cbranch_scc1 L_dec")
        g(f"s_mov_b32 s{sAcc}, 0")
        g(f"s_mov_b32 s{sMx}, 0")
        for k in range(8):
            g(f"s_sub_u32 s{sLv+k}, s{sNow}, s{sLv+k}")
            g(f"s_add_u32 s{sAcc}, s{sAcc}, s{sLv+k}")
            g(f"s_max_u32 s{sMx}, s{sMx}, s{sLv+k}")
        g(f"s_cmpk_gt_u32 s{sMx}, 1000")
        g("s_cbranch_scc1 L_bad")
        g(f"s_lshr_b32 s{sAcc}, s{sAcc}, 3")
        g(f"s_sub_u32 s{sAcc}, s{sNow}, s{sAcc}")
        g(f"s_cmp_eq_u32 s{sMp}, 0")
        g("s_cbranch_scc1 L_notau")
        g(f"s_sub_u32 s{sTau}, s{sAcc}, s{sMp}")
        g(f"s_lshr_b32 s{sTau}, s{sTau}, {1 if step == 2 else 2}")
        if dtau: g(f"s_addk_i32 s{sTau}, {dtau}")
        g.lab("L_notau")
        g(f"s_mov_b32 s{sMp}, s{sAcc}")
        g(f"s_add_u32 s{sTg}, s{sAcc}, s{sTau}")
        if dl: g(f"s_addk_i32 s{sTg}, {dl}")
        g("s_branch L_dec")
        g.lab("L_bad")
        g(f"s_mov_b32 s{sMp}, 0")
        g.lab("L_dec")
        g(f"s_sub_u32 s{sTmp2x}, s{sNow}, s{sTg}")
        g(f"s_cmp_gt_i32 s{sTmp2x}, 0")
        g("s_cbranch_scc1 L_loopB")
        g("s_branch L_loop")
        g.lab("L_last")
    g.c("last two tiles: every remaining load goes out as soon as its registers are free")
    issued = A
    for n in range(A, 14):
        issue(n); issued = n + 1
    def tail_setup(helper=False):
        g.c("everything the tail needs (all loads are in flight meanwhile)")
        g("s_waitcnt lgkmcnt(0)")
        g(f"s_lshl_b32 s{sTmp}, s{sGrp}, 2")
        g(f"s_add_u32 s{sDp}, s12, s{sTmp}")
        g(f"s_addc_u32 s{sDp+1}, s13, 0")
        if chkit == 8 and not helper:
            g(f"s_load_dword s{sChk}, s[{sDp}:{sDp+1}], 0x0")
        g(f"s_mov_b32 s{sW}, s14")
        g(f"s_mov_b32 s{sW+1}, s15")
        g(f"s_mov_b32 s{sW+2}, {STBASE + (NWG*NW*64 if stamps else 0)}")
        g(f"s_mov_b32 s{sW+3}, 0x20000")
        g(f"s_add_u32 s{sOut}, s10, s{sTmp2}")
        g(f"s_addc_u32 s{sOut+1}, s11, 0")
        g(f"s_movk_i32 s{sOut+2}, 1024")
        g(f"s_mov_b32 s{sOut+3}, 0x20000")
        g(f"s_mov_b32 s{sDv}, s12")
        g(f"s_mov_b32 s{sDv+1}, s13")
        g(f"s_movk_i32 s{sDv+2}, 256")
        g(f"s_mov_b32 s{sDv+3}, 0x20000")
        g(f"s_lshl_b32 s{sSl}, s2, 12")
        for k in (1, 2, 3):
            g(f"s_xor_b32 s{sSl+k}, s{sSl}, {k*8*4096}")
        g.c("counter word expected when all four workgroups checked in from THIS XCC: 4 << (3*xcc); ids > 7 never match")
        g(f"s_getreg_b32 s{sExp}, hwreg(HW_REG_XCC_ID, 0, 4)")
        g(f"s_mul_i32 s{sTmp}, s{sExp}, 3")
        g(f"s_lshl_b32 s{sTmp}, 4, s{sTmp}")
        g(f"s_cmp_gt_u32 s{sExp}, 7")
        g(f"s_cselect_b32 s{sExp}, -1, s{sTmp}")
        if forcefb:
            g(f"s_mov_b32 s{sExp}, -1")
        g(f"v_lshlrev_b32 v{vOo}, 3, v0")
        g(f"v_bfe_u32 v{vLH}, v0, 1, 2")
        g(f"s_lshl_b32 s{sTmp}, s{sWave}, 5")
        g(f"v_lshl_add_u32 v{vMo}, v{vLH}, 3, s{sTmp}")
        g(f"v_lshlrev_b32 v{vOutA}, 8, v{vLH}")
        g(f"v_lshlrev_b32 v{vLH}, 5, v{vLH}")
        g(f"v_bfe_u32 v{vZero}, v0, 5, 2")
        g(f"v_lshl_add_u32 v{vOutA}, v{vZero}, 6, v{vOutA}")
        g(f"v_and_b32 v{vZero}, 1, v0")
        g(f"v_lshl_add_u32 v{vOutA}, v{vZero}, 5, v{vOutA}")
        g(f"v_bfe_u32 v{vZero}, v0, 7, 1")
        g(f"v_lshl_add_u32 v{vOutA}, v{vZero}, 3, v{vOutA}")
        g(f"v_bfe_u32 v{vZero}, v0, 3, 2")
        g(f"v_lshl_add_u32 v{vOutA}, v{vZero}, 1, v{vOutA}")
        g(f"v_mov_b32 v{vZero}, 0")
        g(f"s_lshl_b32 s{sTmp}, s{sWave}, 11")
        g(f"v_add_u32 v{vLO}, s{sTmp}, v{vLane16}")
        g(f"s_lshl_b32 s{sTmp}, s{sWave}, 3")
        g(f"v_lshl_add_u32 v{vLM}, v{vLane16}, 1, s{sTmp}")
        g(f"s_lshl_b32 s{sTmp}, s{sWave}, 2")
        g(f"v_mov_b32 v{vLK}, s{sTmp}")

    tail_setup()
    g.L.append("; WARM_BEGIN")
    def w(m): g(f"s_waitcnt vmcnt({issued - 1 - m})")
    for m in (0, 1):
        w(m); QK(m); PV(m + 14); issue(14 + m); issued = 15 + m
    for m in (2, 3):
        w(m); QK(m)
    SMA(4); SMB(); SMC()
    for m in (4, 5, 6, 7):
        w(m); PV(m)
    for m in (8, 9, 10, 11):
        w(m); QK(m)
    SMA(4); SMB(); SMC()
    g.c("row sums across the four key groups; publish (max, sum) and this wave's view of the counter to LDS")
    g(f"v_mov_b32 v{vT1}, v{vL}")
    g("s_waitcnt lgkmcnt(0)")
    g(f"s_and_b32 s{sChk}, s{sChk}, 0xffffff")
    g(f"v_permlane32_swap_b32 v{vL}, v{vT1}")
    g(f"s_cmp_eq_u32 s{sChk}, s{sExp}")
    g(f"s_cselect_b32 s{sOK}, 1, 0")
    g(f"v_add_f32 v{vL}, v{vL}, v{vT1}")
    g(f"v_mov_b32 v{vT1}, v{vL}")
    g(f"v_mov_b32 v{vM}, s{sOK}")
    g("s_nop 0")
    g(f"v_permlane16_swap_b32 v{vL}, v{vT1}")
    g("s_nop 1")
    g(f"v_add_f32 v{vL}, v{vL}, v{vT1}")
    g("s_mov_b64 exec, 0xf")
    g(f"ds_write_b64 v{vLM}, {vr(vMc,2)} offset:{LDS_ML}")
    g(f"ds_write_b32 v{vLK}, v{vM} offset:{LDS_OK}")
    g("s_mov_b64 exec, -1")
    g("s_nop 3")
    for m in (12, 13, 14, 15):
        w(m); PV(m)
    if stamps:
        g(f"s_memrealtime s[{sT0+4}:{sT0+5}]")
    def round_loads(extra=0):
        for k in (1, 2, 3):
            so = f"s{sSl+k}"
            if extra:
                g(f"s_add_u32 s{sTmp}, s{sSl+k}, {extra}"); so = f"s{sTmp}"
            g(f"buffer_load_dwordx2 {vr(vR+4*(k-1),2)}, v{vOo}, s[{sW}:{sW+3}], {so} offen sc1")
            g(f"buffer_load_dwordx2 {vr(vR+4*(k-1)+2,2)}, v{vMo}, s[{sW}:{sW+3}], {so} offen offset:2048 sc1")
    def publish(flags="", extra=0):
        so = f"s{sSl}"
        if extra:
            g(f"s_add_u32 s{sTmp}, s{sSl}, {extra}"); so = f"s{sTmp}"
        g(f"buffer_store_dwordx2 {vr(vP,2)}, v{vOo}, s[{sW}:{sW+3}], {so} offen {flags}")
        g("s_mov_b64 exec, 0x55")
        g(f"buffer_store_dwordx2 {vr(vP+2,2)}, v{vMo}, s[{sW}:{sW+3}], {so} offen offset:2048 {flags}")
        g("s_mov_b64 exec, -1")
    def round_check(target_ok):
        g(f"v_max3_u32 v{vT0}, v{vR}, v{vR+1}, v{vR+2}")
        g(f"v_max3_u32 v{vT1}, v{vR+3}, v{vR+4}, v{vR+5}")
        g(f"v_max3_u32 v{vT0}, v{vT0}, v{vR+6}, v{vR+7}")
        g(f"v_max3_u32 v{vT1}, v{vT1}, v{vR+8}, v{vR+9}")
        g(f"v_max3_u32 v{vT0}, v{vT0}, v{vR+10}, v{vR+11}")
        g(f"v_max_u32 v{vT0}, v{vT0}, v{vT1}")
        g(f"v_cmp_eq_u32 vcc, -1, v{vT0}")
        g(f"s_cbranch_vccz {target_ok}")
    g(f"s_cmp_eq_u32 s{sOK}, 0")
    g("s_cbranch_scc1 L_noearly")
    g.c("early look at the other three partials (valid: all four slots were marked empty before)")
    round_loads()
    g("s_branch L_wr")
    g.lab("L_noearly")
    g("s_nop 7")
    g.lab("L_wr")
    g(f"ds_write_b128 v{vLO}, {vr(vO,4)}")
    g(f"ds_write_b128 v{vLO}, {vr(vO+4,4)} offset:1024")
    vML = vB; vOw = vB + 8; vOKs = vQ
    g("s_waitcnt lgkmcnt(0)")
    g("s_barrier")
    g(f"ds_read_b128 {vr(vML,4)}, v{vLH} offset:{LDS_ML}")
    g(f"ds_read_b128 {vr(vML+4,4)}, v{vLH} offset:{LDS_ML+16}")
    g(f"ds_read_b128 {vr(vOKs,4)}, v{vZero} offset:{LDS_OK}")
    for wv in range(NW):
        g(f"ds_read_b64 {vr(vOw+2*wv,2)}, v{vOo} offset:{wv*2048}")
    g(f"s_mov_b32 s{sTmp}, 0xfffffffe")
    g("s_waitcnt lgkmcnt(4)")
    g(f"v_max_f32 v{vP+2}, v{vML}, v{vML+2}")
    g(f"v_and_b32 v{vOKs}, v{vOKs}, v{vOKs+1}")
    g(f"v_max3_f32 v{vP+2}, v{vP+2}, v{vML+4}, v{vML+6}")
    g(f"v_and_b32 v{vOKs+2}, v{vOKs+2}, v{vOKs+3}")
    for wv in range(NW):
        g(f"v_sub_f32 v{vML+2*wv}, v{vML+2*wv}, v{vP+2}")
    g(f"v_and_b32 v{vOKs}, v{vOKs}, v{vOKs+2}")
    for wv in range(NW):
        g(f"v_exp_f32 v{vML+2*wv}, v{vML+2*wv}")
    g(f"v_readfirstlane_b32 s{sOK}, v{vOKs}")
    g(f"v_mul_f32 v{vP+3}, v{vML}, v{vML+1}")
    for wv in range(1, NW):
        g(f"v_fmac_f32 v{vP+3}, v{vML+2*wv}, v{vML+2*wv+1}")
    g("s_waitcnt lgkmcnt(0)")
    g(f"v_mul_f32 v{vP}, v{vML}, v{vOw}")
    g(f"v_mul_f32 v{vP+1}, v{vML}, v{vOw+1}")
    for wv in range(1, NW):
        g(f"v_fmac_f32 v{vP}, v{vML+2*wv}, v{vOw+2*wv}")
        g(f"v_fmac_f32 v{vP+1}, v{vML+2*wv}, v{vOw+2*wv+1}")
    for r in (2, 3, 0, 1):
        g(f"v_min_u32 v{vP+r}, s{sTmp}, v{vP+r}")
    g(f"s_cmp_eq_u32 s{sOK}, 0")
    g("s_cbranch_scc1 L_slow")
    g("s_waitcnt vmcnt(0)")
    round_check("L_final")
    publish()
    round_loads()
    g("s_waitcnt vmcnt(0)")
    round_check("L_final")
    g.lab("L_round2")
    g.c("own partial is visible now: if another one is still missing, its owner will see ours and finish the job")
    round_loads()
    g("s_waitcnt vmcnt(0)")
    round_check("L_final")
    g("s_branch L_fin")
    g.lab("L_slow")
    g.c("placement unknown or different XCCs: publish in both regions, then one returning atomic decides")
    publish()
    publish("sc1", R2)
    g("s_waitcnt vmcnt(0)")
    g("s_barrier")
    g(f"s_cmp_lg_u32 s{sWave}, 0")
    g("s_cbranch_scc1 L_noatom")
    g("s_mov_b64 exec, 1")
    g(f"v_mov_b32 v{vT0}, 0x1000000")
    g(f"s_lshl_b32 s{sTmp}, s{sGrp}, 2")
    g(f"buffer_atomic_add v{vT0}, v{vZero}, s[{sDv}:{sDv+3}], s{sTmp} offen sc0")
    g("s_waitcnt vmcnt(0)")
    g(f"ds_write_b32 v{vZero}, v{vT0} offset:{LDS_FLAG}")
    g("s_mov_b64 exec, -1")
    g("s_waitcnt lgkmcnt(0)")
    g.lab("L_noatom")
    g("s_barrier")
    g(f"ds_read_b32 v{vT0}, v{vZero} offset:{LDS_FLAG}")
    g("s_waitcnt lgkmcnt(0)")
    g(f"v_readfirstlane_b32 s{sChk}, v{vT0}")
    g("s_nop 3")
    g(f"s_and_b32 s{sTmp}, s{sChk}, 0xffffff")
    g(f"s_cmp_eq_u32 s{sTmp}, s{sExp}")
    g("s_cbranch_scc1 L_round2")
    g(f"s_lshr_b32 s{sTmp}, s{sChk}, 24")
    g(f"s_cmp_lg_u32 s{sTmp}, 3")
    g("s_cbranch_scc1 L_fin")
    round_loads(R2)
    g("s_waitcnt vmcnt(0)")
    g.lab("L_final")
    R = lambda k, r: (vP + r) if k == 0 else (vR + 4 * (k - 1) + r)
    g(f"v_max_f32 v{vMc}, v{R(0,2)}, v{R(1,2)}")
    g(f"v_max3_f32 v{vMc}, v{vMc}, v{R(2,2)}, v{R(3,2)}")
    for k in range(4):
        g(f"v_sub_f32 v{R(k,2)}, v{R(k,2)}, v{vMc}")
    for k in range(4):
        g(f"v_exp_f32 v{R(k,2)}, v{R(k,2)}")
    g("s_nop 0")
    for r in (3, 0, 1):
        for k in range(4):
            g(f"v_mul_f32 v{R(k,r)}, v{R(k,r)}, v{R(k,2)}")
    for r in (3, 0, 1):
        g(f"v_add_f32 v{R(0,r)}, v{R(0,r)}, v{R(1,r)}")
        g(f"v_add_f32 v{R(2,r)}, v{R(2,r)}, v{R(3,r)}")
    g(f"v_add_f32 v{R(0,3)}, v{R(0,3)}, v{R(2,3)}")
    g(f"v_rcp_f32 v{vL}, v{R(0,3)}")
    g(f"v_add_f32 v{R(0,0)}, v{R(0,0)}, v{R(2,0)}")
    g(f"v_add_f32 v{R(0,1)}, v{R(0,1)}, v{R(2,1)}")
    g(f"v_mul_f32 v{R(0,0)}, v{R(0,0)}, v{vL}")
    g(f"v_mul_f32 v{R(0,1)}, v{R(0,1)}, v{vL}")
    g(f"v_cvt_pk_bf16_f32 v{R(0,0)}, v{R(0,0)}, v{R(0,1)}")
    g(f"buffer_store_short v{R(0,0)}, v{vOutA}, s[{sOut}:{sOut+3}], 0 offen")
    g(f"buffer_store_short_d16_hi v{R(0,0)}, v{vOutA}, s[{sOut}:{sOut+3}], 0 offen offset:16")
    g.L.append("; WARM_END")
    g.lab("L_fin")
    if stamps:
        g(f"s_memrealtime s[{sT0+6}:{sT0+7}]")
        g(f"s_getreg_b32 s{sT0+8}, hwreg(HW_REG_XCC_ID)")
        g(f"s_mov_b32 s{sT0+9}, s{sOK}")
        g("s_waitcnt lgkmcnt(0)")
        g(f"s_mul_i32 s{sTmp}, s2, {NW}")
        g(f"s_add_u32 s{sTmp}, s{sTmp}, s{sWave}")
        g(f"s_lshl_b32 s{sTmp}, s{sTmp}, 6")
        g(f"s_add_u32 s{sTmp}, s{sTmp}, {STBASE}")
        g("s_mov_b64 exec, 1")
        for j in range(10):
            g(f"v_mov_b32 v{vKV+j}, s{sT0+j}")
        g(f"v_mov_b32 v{vKV+12}, 0")
        g(f"buffer_store_dwordx4 {vr(vKV,4)}, v{vKV+12}, s[{sW}:{sW+3}], s{sTmp} offen")
        g(f"buffer_store_dwordx4 {vr(vKV+4,4)}, v{vKV+12}, s[{sW}:{sW+3}], s{sTmp} offen offset:16")
        g(f"buffer_store_dwordx2 {vr(vKV+8,2)}, v{vKV+12}, s[{sW}:{sW+3}], s{sTmp} offen offset:32")
    g.lab("L_done")
    g("s_endpgm")
    g.lab("L_helper")
    g.c("helper wave: mark this workgroup's partial slot as empty, then count this workgroup (and its XCC) in")
    g("s_load_dwordx4 s[12:15], s[0:1], 32")
    g(f"s_getreg_b32 s{sExp}, hwreg(HW_REG_XCC_ID, 0, 4)")
    g(f"v_and_b32 v{vVoff}, 63, v0")
    g(f"v_lshlrev_b32 v{vVoff}, 4, v{vVoff}")
    for r in range(4):
        g(f"v_mov_b32 v{vS+r}, -1")
    g(f"s_cmp_gt_u32 s{sExp}, 7")
    g("s_cbranch_scc1 L_done")
    g(f"s_mul_i32 s{sExp}, s{sExp}, 3")
    g(f"s_lshl_b32 s{sExp}, 1, s{sExp}")
    g(f"s_lshl_b32 s{sTmp}, s{sGrp}, 2")
    g(f"s_lshl_b32 s{sSl}, s2, 12")
    g(f"s_mov_b32 s{sW+2}, {STBASE}")
    g(f"s_mov_b32 s{sW+3}, 0x20000")
    g("s_waitcnt lgkmcnt(0)")
    g(f"s_mov_b32 s{sW}, s14")
    g(f"s_mov_b32 s{sW+1}, s15")
    for wv in range(2):
        g(f"buffer_store_dwordx4 {vr(vS,4)}, v{vVoff}, s[{sW}:{sW+3}], s{sSl} offen offset:{wv*1024}")
    g("s_mov_b64 exec, 0xff")
    g(f"buffer_store_dwordx4 {vr(vS,4)}, v{vVoff}, s[{sW}:{sW+3}], s{sSl} offen offset:2048")
    g(f"s_add_u32 s{sDp}, s12, s{sTmp}")
    g(f"s_addc_u32 s{sDp+1}, s13, 0")
    g("s_waitcnt vmcnt(0)")
    g(f"s_atomic_add s{sExp}, s[{sDp}:{sDp+1}], 0x0")
    if warm:
        g.c("then walk the tail code (one branch per cache line, no lane active) so it is in the instruction cache")
        g("s_waitcnt lgkmcnt(0)")
        g("s_mov_b64 exec, -1")
        g(f"s_lshl_b32 s{sTmp}, s{sGrp}, 21")
        g(f"s_add_u32 s{sK}, s6, s{sTmp}")
        g(f"s_addc_u32 s{sK+1}, s7, 0")
        g(f"s_add_u32 s{sV}, s8, s{sTmp}")
        g(f"s_addc_u32 s{sV+1}, s9, 0")
        tail_setup(True)
        g("s_mov_b64 exec, 0")
        g("s_branch L_hop0")
    else:
        g("s_endpgm")
    g.lab("L_codeend")
    g.L.append('.section .rodata,"a"')
    g.L.append(".p2align 6")
    g.L.append(f".amdhsa_kernel {NAME}_kernel")
    g.L.append(f"  .amdhsa_next_free_vgpr {nv}")
    g.L.append(f"  .amdhsa_next_free_sgpr 92")
    g.L.append(f"  .amdhsa_accum_offset {(nv+3)//4*4}")
    g.L.append("  .amdhsa_group_segment_fixed_size 0")
    g.L.append("  .amdhsa_kernarg_size 48")
    g.L.append("  .amdhsa_user_sgpr_count 2")
    g.L.append("  .amdhsa_user_sgpr_kernarg_segment_ptr 1")
    g.L.append("  .amdhsa_system_sgpr_workgroup_id_x 1")
    g.L.append(".end_amdhsa_kernel")
    if warm:
        return add_hops(g.L, warm)
    return g.text()

def add_hops(L, spacing):
    import subprocess, re
    L = "\n".join(L).split("\n")
    def is_insn(l):
        t = l.strip()
        return bool(t) and not t.startswith(";") and not t.startswith(".") and not t.endswith(":")
    tmp = [l if "L_hop0" not in l else "    s_branch L_done" for l in L]
    open("hop.s", "w").write("\n".join(tmp) + "\n")
    subprocess.run(["clang", "-x", "assembler", "-target", "amdgcn-amd-amdhsa", "-mcpu=gfx950", "-c", "hop.s", "-o", "hop.o"], check=True)
    d = subprocess.run(["llvm-objdump", "-d", "--mcpu=gfx950", "hop.o"], capture_output=True, text=True).stdout
    sizes = [4 * len(m.group(1).split()) for m in re.finditer(r"// [0-9A-F]{12}: ([0-9A-F ]+)$", d, re.M)]
    out = []; k = 0; inside = False; since = None; nh = 0
    txt_end = [i for i, l in enumerate(L) if l.startswith(".section")][0]
    for i, l in enumerate(L):
        if l.startswith("; WARM_BEGIN"):
            inside = True; since = 1 << 30; continue
        if l.startswith("; WARM_END"):
            inside = False
            out.append(f"L_hop{nh}:"); out.append("    s_cbranch_execz L_done"); continue
        if i < txt_end and is_insn(l):
            sz = sizes[k]; k += 1
            if inside:
                if since + sz > spacing:
                    out.append(f"L_hop{nh}:"); out.append(f"    s_cbranch_execz L_hop{nh+1}"); nh += 1; since = 4
                since += sz
        out.append(l)
    assert k == len(sizes), (k, len(sizes))
    return "\n".join(out) + "\n"

if __name__ == "__main__":
    ap = argparse.ArgumentParser()
    ap.add_argument("-o", default="cdna_kernels/" + NAME + ".s")
    ap.add_argument("--a", type=int, default=5)
    ap.add_argument("--waits", default="4")
    ap.add_argument("--ld", default="nt")
    ap.add_argument("--stamps", action="store_true")
    ap.add_argument("--forcefb", action="store_true")
    ap.add_argument("--chkit", type=int, default=8)
    ap.add_argument("--tog", type=lambda x: int(x, 0), default=0xc000)
    ap.add_argument("--cpf", action="store_true")
    ap.add_argument("--warm", type=int, default=0)
    ap.add_argument("--flat", action="store_true")
    ap.add_argument("--noimm", action="store_true")
    ap.add_argument("--tau", type=int, default=0)
    ap.add_argument("--t00", type=int, default=70)
    ap.add_argument("--wlo", default="4")
    ap.add_argument("--whi", default="5")
    ap.add_argument("--org1", action="store_true")
    ap.add_argument("--selfcal", action="store_true")
    ap.add_argument("--dtau", type=int, default=0)
    ap.add_argument("--dl", type=int, default=0)
    ap.add_argument("--anchors", default="1,5,9")
    a = ap.parse_args()
    w = [int(x) for x in a.waits.split(",")]
    open(a.o, "w").write(gen(a.a, w, a.ld.replace("_", " ").replace("none", ""), a.stamps, a.forcefb, a.chkit, a.tog, a.cpf, a.warm, a.flat, a.noimm, a.tau, a.t00, [int(x) for x in a.wlo.split(",")], [int(x) for x in a.whi.split(",")], a.org1, a.selfcal, a.dtau, a.dl, tuple(int(x) for x in a.anchors.split(","))))
```

```python
import sys, math, argparse
from gen import HDR, NAME, G, vr, f2u

def gen(A=6, waits=(4, 4, 4, 5), ldflags="nt", stamps=False, forcefb=False, chkit=8, tog=0xc000, cpf=False, warm=0, flat=False, noimm=False, tau=0, t00=95, wlo=None, whi=None, org1=False, selfcal=False, dtau=0, dl=0, anchors=(1,5,9), fcap=14, fixtau=False):
    g = G()
    NW = 4; NSPLIT = 4; NG = 64
    NWG = NG * NSPLIT
    T = 32
    GB = 2 << 20
    NT = 320
    LDS_ML = NW * 2048
    LDS_OK = LDS_ML + 4 * NW * 8
    LDS_FLAG = LDS_OK + 16
    LDS = LDS_FLAG + 16
    cscale = (128 ** -0.5) * math.log2(math.e)
    assert all(w <= A - 1 for w in waits) and A <= 12
    R2 = NWG * 4096
    STBASE = 2 * NWG * 4096

    vKoff = 1; vVoff = 2; vM = 3; vMc = 4; vL = 5; vMask0 = 6; vMask1 = 7
    vT0 = 8; vT1 = 9; vA = 10; vMcN = 11
    vQ = 12; vO = 16; vS = 24; vB = 40; vKV = 58
    vR = vS; vP = vS + 12
    e = vKV + 64
    vOo = e; vMo = e + 1; vOutA = e + 2; vLO = e + 3; vLM = e + 4; vLH = e + 5; vLK = e + 6; vZero = e + 7; vLane16 = e + 8
    nv = e + 9
    def slot(n): return vKV + (n % 16) * 4
    def X(i): return vB + 2 + 4 * i
    S = lambda i, r: vS + 4 * i + r

    sK = 16; sV = 20; sQ = 24; sW = 28; sOut = 32; sDv = 36
    sGrp = 40; sSplit = 41; sWave = 42; sKo = 43; sVo = 44; sC = 45; sIt = 46; sTmp = 47; sTmp2 = 48; sChk = 49
    sT0 = 50
    sDp = 60; sSl = 62; sOK = 67; sExp = 68; sCp = 4; sNow = 70; sTg = 72; sTau = 73; sLn = 74; sRep = 75; sMp = 76; sAcc = 77; sMx = 78; sPw = 79; sLv = 80; sTmp2x = 88

    g.L.append(HDR.rstrip())
    if stamps: g.L.append(f"; STAMPBASE {STBASE}")
    g.L.append(f"; @launch grid=({NWG},1,1) block=({NT},1,1) lds={LDS}")
    g.L.append("""; ---------------------------------------------------------------------------------------------
; ---------------------------------------------------------------------------------------------""")
    g.L.append('.amdgcn_target "amdgcn-amd-amdhsa--gfx950"')
    g.L.append(".text")
    g.L.append(f".globl {NAME}_kernel")
    g.L.append(".p2align 8")
    g.L.append(f".type {NAME}_kernel,@function")
    g.lab(f"{NAME}_kernel")
    if stamps:
        g(f"s_memrealtime s[{sT0}:{sT0+1}]")
    g(f"s_cmpk_ge_u32 s2, {NWG}")
    g("s_cbranch_scc1 L_done")
    g(f"s_load_dwordx2 s[{sK}:{sK+1}], s[0:1], 8")
    if tau and not org1: g(f"s_memrealtime s[{sNow}:{sNow+1}]")
    g(f"s_load_dwordx2 s[{sV}:{sV+1}], s[0:1], 16")
    g(f"s_load_dwordx2 s[{sQ}:{sQ+1}], s[0:1], 0")
    g.c("wg = 8*jj + x ; split = jj&3 ; group = x + 8*(jj>>2)  (a group's 4 workgroups usually share an XCD: speed only)")
    g.c("byte offset of the first tile: group*2MiB + (4*split + wave)*4KiB  (tile = 16 keys; wave part lives in the VGPR offset)")
    g(f"s_and_b32 s{sGrp}, s2, 7")
    g(f"s_lshr_b32 s{sTmp}, s2, 5")
    g(f"s_lshl3_add_u32 s{sGrp}, s{sTmp}, s{sGrp}")
    g(f"s_and_b32 s{sTmp}, s2, 24")
    g(f"s_lshl_b32 s{sKo}, s{sGrp}, 21")
    g(f"s_lshl_b32 s{sTmp}, s{sTmp}, 11")
    g(f"s_or_b32 s{sKo}, s{sKo}, s{sTmp}")
    g(f"s_brev_b32 s{sK+2}, 16                     ; 128 MiB")
    g(f"s_lshl_b32 s{sK+3}, 1, 17                  ; 0x20000")
    g.c("lane l = 16g + 4a + b.  K: key a, bytes 64g+16b of the row.  Q: head b, bytes 64g+16a.  V: linear")
    g(f"v_readfirstlane_b32 s{sWave}, v0")
    g(f"v_and_b32 v{vT0}, 3, v0")
    g(f"v_and_b32 v{vT1}, 0xcc, v0")
    g(f"v_and_b32 v{vA}, 48, v0")
    g(f"v_lshlrev_b32 v{vKoff}, 4, v{vT0}")
    g(f"v_lshl_or_b32 v{vKoff}, v{vT1}, 6, v{vKoff}")
    g(f"v_lshl_or_b32 v{vKoff}, v{vA}, 2, v{vKoff}")
    g(f"s_cmpk_ge_u32 s{sWave}, 256")
    g("s_cbranch_scc1 L_helper")
    stride = 16 * 4096
    def issue(n):
        p = n % 8
        so, vo, srd = (sKo, vKoff, sK) if p < 4 else (sVo, vVoff, sV)
        g(f"buffer_load_dwordx4 {vr(slot(n),4)}, v{vo}, s[{srd}:{srd+3}], s{so} offen {ldflags}")
        if p % 4 == 3:
            g(f"s_add_u32 s{so}, s{so}, {stride-3072}")
            if tog: g(f"s_xor_b32 s{so}, s{so}, {tog:#x}")
        else:
            g(f"s_addk_i32 s{so}, 1024")
    g("s_waitcnt lgkmcnt(0)")
    g(f"buffer_load_dwordx4 {vr(slot(0),4)}, v{vKoff}, s[{sK}:{sK+3}], s{sKo} offen {ldflags}")
    g(f"s_mov_b32 s{sVo}, s{sKo}")
    g(f"s_addk_i32 s{sKo}, 1024")
    g(f"s_lshr_b32 s{sWave}, s{sWave}, 6")
    g(f"v_bfe_u32 v{vT1}, v0, 2, 2")
    g(f"v_lshlrev_b32 v{vMcN}, 8, v{vT0}")
    g(f"v_lshl_or_b32 v{vMcN}, v{vT1}, 4, v{vMcN}")
    g(f"v_lshl_or_b32 v{vMcN}, v{vA}, 2, v{vMcN}")
    g(f"s_lshl_b32 s{sTmp2}, s{sGrp}, 10")
    g(f"s_mov_b32 s{sQ+2}, 0x10000")
    g(f"s_mov_b32 s{sQ+3}, s{sK+3}")
    g(f"buffer_load_dwordx4 {vr(vQ,4)}, v{vMcN}, s[{sQ}:{sQ+3}], s{sTmp2} offen")
    g(f"v_and_b32 v{vLane16}, 63, v0")
    issue(1)
    g(f"v_and_b32 v{vVoff}, 0xc0, v0")
    issue(2)
    g(f"v_lshlrev_b32 v{vLane16}, 4, v{vLane16}       ; lane*16")
    issue(3)
    g(f"v_lshl_or_b32 v{vVoff}, v{vVoff}, 6, v{vLane16}")
    g(f"s_mov_b32 s{sV+2}, s{sK+2}")
    g(f"s_mov_b32 s{sV+3}, s{sK+3}")
    for n in range(4, A):
        issue(n)
    g("s_load_dwordx2 s[10:11], s[0:1], 24          ; out")
    g("s_load_dwordx4 s[12:15], s[0:1], 32")
    if cpf:
        g.c("pull this kernel's own code into L2 early")
        g(f"s_getpc_b64 s[{sCp}:{sCp+1}]")
        g.lab("L_pc")
        g(f"s_sub_u32 s{sCp}, s{sCp}, L_pc-{NAME}_kernel")
        g(f"s_subb_u32 s{sCp+1}, s{sCp+1}, 0")
        g(f"s_mov_b32 s{sCp+2}, L_codeend-{NAME}_kernel")
        g(f"s_mov_b32 s{sCp+3}, 0x20000")
        g(f"v_lshlrev_b32 v{vM}, 4, v0")
        g(f"buffer_load_dwordx4 {vr(slot(12),4)}, v{vM}, s[{sCp}:{sCp+3}], 0 offen")
    g(f"s_mov_b32 s{sC}, {f2u(cscale):#x}           ; D^-0.5 * log2(e)")
    g(f"v_mov_b32 v{vM}, 0xff800000")
    g(f"v_mov_b32 v{vMc}, v{vM}")
    g(f"v_mov_b32 v{vL}, 0")
    for r in range(8):
        g(f"v_mov_b32 v{vO+r}, 0")
    for r in range(18):
        g(f"v_mov_b32 v{vB+r}, 0")
    for r in range(8):
        g(f"v_mov_b32 v{slot(14)+r}, 0")
    g.c("P placement masks: column group a selects bf16 slot a of the B fragment")
    g(f"v_and_b32 v{vT0}, 1, v{vT1}")
    g(f"v_lshlrev_b32 v{vT0}, 4, v{vT0}")
    g(f"v_mov_b32 v{vA}, 0xffff")
    g(f"v_lshlrev_b32 v{vA}, v{vT0}, v{vA}")
    g(f"v_cmp_gt_u32 vcc, 2, v{vT1}")
    g(f"s_mov_b32 s{sIt}, {T//2}")
    g(f"s_mov_b32 s{sChk}, 0")
    g(f"v_cndmask_b32 v{vMask0}, 0, v{vA}, vcc")
    g(f"v_cndmask_b32 v{vMask1}, v{vA}, 0, vcc")
    if stamps:
        g(f"s_waitcnt vmcnt({A-1})")
        g(f"s_memrealtime s[{sT0+2}:{sT0+3}]")
    def QK(m):
        i = m % 8
        g(f"v_mfma_f32_16x16x32_bf16 {vr(S(i,0),4)}, {vr(slot(m),4)}, {vr(vQ,4)}, 0")
    def PV(mv):
        i = mv % 8 - 4
        g(f"v_mfma_f32_16x16x32_bf16 {vr(vO,4)}, {vr(slot(mv),4)}, {vr(X(i),4)}, {vr(vO,4)}")
        g(f"v_mfma_f32_16x16x32_bf16 {vr(vO+4,4)}, {vr(slot(mv),4)}, {vr(X(i)-2,4)}, {vr(vO+4,4)}")
    def SMA(nop=3):
        g(f"s_nop {nop}")
        for i in range(4):
            g(f"v_add_f32_dpp v{S(i,1)}, v{S(i,2)}, v{S(i,0)} row_ror:8 row_mask:0xf bank_mask:0x1")
        for i in range(4):
            g(f"v_add_f32_dpp v{S(i,1)}, v{S(i,0)}, v{S(i,2)} row_ror:8 row_mask:0xf bank_mask:0x4")
        for i in range(4):
            g(f"v_add_f32_dpp v{S(i,1)}, v{S(i,1)}, v{S(i,3)} row_ror:8 row_mask:0xf bank_mask:0x8")
        for i in range(4):
            g(f"v_add_f32_dpp v{S(i,1)}, v{S(i,3)}, v{S(i,1)} row_ror:8 row_mask:0xf bank_mask:0x2")
        for i in range(4):
            g(f"v_add_f32_dpp v{S(i,0)}, v{S(i,1)}, v{S(i,1)} row_ror:4 row_mask:0xf bank_mask:0xf")
    def SMB():
        g(f"v_max3_f32 v{vT0}, v{S(0,0)}, v{S(1,0)}, v{S(2,0)}")
        g(f"v_max3_f32 v{vT0}, v{vT0}, v{S(3,0)}, v{vM}")
        g(f"v_mov_b32 v{vT1}, v{vT0}")
        g("s_nop 1")
        g(f"v_permlane32_swap_b32 v{vT0}, v{vT1}")
        g("s_nop 1")
        g(f"v_max_f32 v{vT0}, v{vT0}, v{vT1}")
        g(f"v_mov_b32 v{vT1}, v{vT0}")
        g("s_nop 1")
        g(f"v_permlane16_swap_b32 v{vT0}, v{vT1}")
        g("s_nop 1")
        g(f"v_max_f32 v{vM}, v{vT0}, v{vT1}")
        g(f"v_mul_f32 v{vMcN}, s{sC}, v{vM}")
        g(f"v_sub_f32 v{vA}, v{vMc}, v{vMcN}")
        g(f"v_exp_f32 v{vA}, v{vA}")
        for i in range(4):
            g(f"v_fma_f32 v{S(i,0)}, v{S(i,0)}, s{sC}, -v{vMcN}")
        for i in range(4):
            g(f"v_exp_f32 v{S(i,0)}, v{S(i,0)}")
        g(f"v_mov_b32 v{vMc}, v{vMcN}")
    def SMC():
        for r in range(8):
            g(f"v_mul_f32 v{vO+r}, v{vO+r}, v{vA}")
        for i in range(4):
            g(f"v_cvt_pk_bf16_f32 v{S(i,1)}, v{S(i,0)}, v{S(i,0)}")
        for i in range(4):
            g(f"v_and_b32 v{X(i)}, v{S(i,1)}, v{vMask0}")
            g(f"v_and_b32 v{X(i)+1}, v{S(i,1)}, v{vMask1}")
        g(f"v_fma_f32 v{vL}, v{vL}, v{vA}, v{S(0,0)}")
        g(f"v_add_f32 v{S(1,0)}, v{S(1,0)}, v{S(2,0)}")
        g(f"v_add_f32 v{vL}, v{vL}, v{S(3,0)}")
        g(f"v_add_f32 v{vL}, v{vL}, v{S(1,0)}")
    def compute(m):
        p = m % 8
        if p < 4: QK(m)
        if p in (0, 1): PV(m - 2 + 16)
        if p == 4: SMA()
        if p == 5: SMB()
        if p == 6: SMC(); PV(m - 2)
        if p == 7: PV(m - 2)
    if not tau:
        g.lab("L_loop")
        for m in range(16):
            g(f"s_waitcnt vmcnt({waits[m % len(waits)]})")
            issue(m + A)
            compute(m)
        g(f"s_sub_u32 s{sIt}, s{sIt}, 1")
        g(f"s_cmp_lg_u32 s{sIt}, 1")
        g("s_cbranch_scc1 L_loop")
    elif not selfcal:
        if org1:
            g(f"s_waitcnt vmcnt({A-1})")
            g(f"s_memrealtime s[{sNow}:{sNow+1}]")
        g("s_waitcnt lgkmcnt(0)")
        g(f"s_add_u32 s{sTg}, s{sNow}, {t00 & 0xffffffff}")
        def body(name, ws_):
            g.lab(name)
            for m in range(16):
                if m == 14:
                    g(f"s_memrealtime s[{sNow}:{sNow+1}]")
                g(f"s_waitcnt vmcnt({ws_[m % len(ws_)]})")
                issue(m + A)
                compute(m)
            g(f"s_sub_u32 s{sIt}, s{sIt}, 1")
            g(f"s_cmp_eq_u32 s{sIt}, 1")
            g("s_cbranch_scc1 L_last")
            g(f"s_add_u32 s{sTg}, s{sTg}, {tau}")
            g("s_waitcnt lgkmcnt(0)")
            g(f"s_sub_u32 s{sTmp}, s{sNow}, s{sTg}")
            g(f"s_cmp_gt_i32 s{sTmp}, 0")
        body("L_loop", wlo)
        g("s_cbranch_scc0 L_loop")
        body("L_loopB", whi)
        g("s_cbranch_scc1 L_loopB")
        g("s_branch L_loop")
        g.lab("L_last")
    else:
        PACE = 3 << 20
        g("s_waitcnt lgkmcnt(0)")
        g(f"s_add_u32 s{sTg}, s{sNow}, {t00 & 0xffffffff}")
        g(f"s_movk_i32 s{sTau}, {tau}")
        g(f"s_mov_b32 s{sLn}, {PACE - 128}")
        g(f"s_lshl_b32 s{sPw}, s2, 2")
        g(f"s_add_u32 s{sPw}, s{sPw}, {PACE}")
        g(f"s_or_b32 s{sRep}, s{sWave}, s2")
        g(f"s_lshr_b32 s{sTmp}, s2, 3")
        g(f"s_or_b32 s{sRep}, s{sWave}, s{sTmp}")
        g(f"s_mov_b32 s{sMp}, 0")
        def body(name, ws_):
            g.lab(name)
            for m in range(16):
                if m == 14:
                    g(f"s_memrealtime s[{sNow}:{sNow+1}]")
                    g(f"s_load_dwordx8 s[{sLv}:{sLv+7}], s[14:15], s{sLn}")
                g(f"s_waitcnt vmcnt({ws_[m % len(ws_)]})")
                issue(m + A)
                compute(m)
        body("L_loop", wlo)
        g("s_branch L_ctl")
        body("L_loopB", whi)
        g.lab("L_ctl")
        g(f"s_sub_u32 s{sIt}, s{sIt}, 1")
        g(f"s_cmp_eq_u32 s{sIt}, 1")
        g("s_cbranch_scc1 L_last")
        g(f"s_add_u32 s{sTg}, s{sTg}, s{sTau}")
        g(f"s_addk_i32 s{sLn}, 128")
        g("s_waitcnt lgkmcnt(0)")
        g(f"s_cmp_lg_u32 s{sRep}, 0")
        g("s_cbranch_scc1 L_nopub")
        g(f"s_mov_b32 s{sTmp}, s{sNow}")
        g(f"s_atomic_swap s{sTmp}, s[14:15], s{sPw}")
        g(f"s_addk_i32 s{sPw}, 128")
        g.lab("L_nopub")
        a0 = anchors[0]; step = anchors[1] - anchors[0]
        assert all(anchors[i+1]-anchors[i] == step for i in range(len(anchors)-1)) and step in (2, 4)
        g(f"s_and_b32 s{sTmp2x}, s{sIt}, {step-1}")
        g(f"s_cmp_lg_u32 s{sTmp2x}, {(14 - a0) % step}")
        g("s_cbranch_scc1 L_dec")
        g(f"s_cmp_lt_u32 s{sIt}, {14 - (a0 if fixtau else anchors[-1])}")
        g("s_cbranch_scc1 L_dec")
        g(f"s_cmp_gt_u32 s{sIt}, {14 - a0}")
        g("s_cbranch_scc1 L_dec")
        g(f"s_mov_b32 s{sAcc}, 0")
        g(f"s_mov_b32 s{sMx}, 0")
        for k in range(8):
            g(f"s_sub_u32 s{sLv+k}, s{sNow}, s{sLv+k}")
            g(f"s_add_u32 s{sAcc}, s{sAcc}, s{sLv+k}")
            g(f"s_max_u32 s{sMx}, s{sMx}, s{sLv+k}")
        g(f"s_cmpk_gt_u32 s{sMx}, 1000")
        g("s_cbranch_scc1 L_bad")
        g(f"s_lshr_b32 s{sAcc}, s{sAcc}, 3")
        g(f"s_sub_u32 s{sAcc}, s{sNow}, s{sAcc}")
        g(f"s_cmp_eq_u32 s{sMp}, 0")
        g("s_cbranch_scc1 L_notau")
        g(f"s_sub_u32 s{sTau}, s{sAcc}, s{sMp}")
        g(f"s_lshr_b32 s{sTau}, s{sTau}, {1 if step == 2 else 2}")
        if dtau: g(f"s_addk_i32 s{sTau}, {dtau}")
        g.lab("L_notau")
        g(f"s_mov_b32 s{sMp}, s{sAcc}")
        g(f"s_add_u32 s{sTg}, s{sAcc}, s{sTau}")
        if dl: g(f"s_addk_i32 s{sTg}, {dl}")
        g("s_branch L_dec")
        g.lab("L_bad")
        g(f"s_mov_b32 s{sMp}, 0")
        g.lab("L_dec")
        g(f"s_sub_u32 s{sTmp2x}, s{sNow}, s{sTg}")
        g(f"s_cmp_gt_i32 s{sTmp2x}, 0")
        g("s_cbranch_scc1 L_loopB")
        g("s_branch L_loop")
        g.lab("L_last")
    g.c("last two tiles: slightly deeper window, no loads past the end")
    issued = A
    for n in range(A, fcap):
        issue(n); issued = n + 1
    def tail_setup(helper=False):
        g.c("everything the tail needs (all loads are in flight meanwhile)")
        g("s_waitcnt lgkmcnt(0)")
        g(f"s_lshl_b32 s{sTmp}, s{sGrp}, 2")
        g(f"s_add_u32 s{sDp}, s12, s{sTmp}")
        g(f"s_addc_u32 s{sDp+1}, s13, 0")
        if chkit == 8 and not helper:
            g(f"s_load_dword s{sChk}, s[{sDp}:{sDp+1}], 0x0")
        g(f"s_mov_b32 s{sW}, s14")
        g(f"s_mov_b32 s{sW+1}, s15")
        g(f"s_mov_b32 s{sW+2}, {STBASE + (NWG*NW*64 if stamps else 0)}")
        g(f"s_mov_b32 s{sW+3}, 0x20000")
        g(f"s_add_u32 s{sOut}, s10, s{sTmp2}")
        g(f"s_addc_u32 s{sOut+1}, s11, 0")
        g(f"s_movk_i32 s{sOut+2}, 1024")
        g(f"s_mov_b32 s{sOut+3}, 0x20000")
        g(f"s_mov_b32 s{sDv}, s12")
        g(f"s_mov_b32 s{sDv+1}, s13")
        g(f"s_movk_i32 s{sDv+2}, 256")
        g(f"s_mov_b32 s{sDv+3}, 0x20000")
        g(f"s_lshl_b32 s{sSl}, s2, 12")
        for k in (1, 2, 3):
            g(f"s_xor_b32 s{sSl+k}, s{sSl}, {k*8*4096}")
        g.c("counter word expected when all four workgroups checked in from THIS XCC: 4 << (3*xcc); ids > 7 never match")
        g(f"s_getreg_b32 s{sExp}, hwreg(HW_REG_XCC_ID, 0, 4)")
        g(f"s_mul_i32 s{sTmp}, s{sExp}, 3")
        g(f"s_lshl_b32 s{sTmp}, 4, s{sTmp}")
        g(f"s_cmp_gt_u32 s{sExp}, 7")
        g(f"s_cselect_b32 s{sExp}, -1, s{sTmp}")
        if forcefb:
            g(f"s_mov_b32 s{sExp}, -1")
        g(f"v_lshlrev_b32 v{vOo}, 3, v0")
        g(f"v_bfe_u32 v{vLH}, v0, 1, 2")
        g(f"s_lshl_b32 s{sTmp}, s{sWave}, 5")
        g(f"v_lshl_add_u32 v{vMo}, v{vLH}, 3, s{sTmp}")
        g(f"v_lshlrev_b32 v{vOutA}, 8, v{vLH}")
        g(f"v_lshlrev_b32 v{vLH}, 5, v{vLH}")
        g(f"v_bfe_u32 v{vZero}, v0, 5, 2")
        g(f"v_lshl_add_u32 v{vOutA}, v{vZero}, 6, v{vOutA}")
        g(f"v_and_b32 v{vZero}, 1, v0")
        g(f"v_lshl_add_u32 v{vOutA}, v{vZero}, 5, v{vOutA}")
        g(f"v_bfe_u32 v{vZero}, v0, 7, 1")
        g(f"v_lshl_add_u32 v{vOutA}, v{vZero}, 3, v{vOutA}")
        g(f"v_bfe_u32 v{vZero}, v0, 3, 2")
        g(f"v_lshl_add_u32 v{vOutA}, v{vZero}, 1, v{vOutA}")
        g(f"v_mov_b32 v{vZero}, 0")
        g(f"s_lshl_b32 s{sTmp}, s{sWave}, 11")
        g(f"v_add_u32 v{vLO}, s{sTmp}, v{vLane16}")
        g(f"s_lshl_b32 s{sTmp}, s{sWave}, 3")
        g(f"v_lshl_add_u32 v{vLM}, v{vLane16}, 1, s{sTmp}")
        g(f"s_lshl_b32 s{sTmp}, s{sWave}, 2")
        g(f"v_mov_b32 v{vLK}, s{sTmp}")

    tail_setup()
    g.L.append("; WARM_BEGIN")
    st = {"issued": issued}
    def w(m):
        g(f"s_waitcnt vmcnt({st['issued'] - 1 - m})")
        n = m + fcap
        if fcap < 14 and n <= 15 and n >= st["issued"]:
            issue(n); st["issued"] = n + 1
    for m in (0, 1):
        w(m); QK(m); PV(m + 14)
        if fcap >= 14:
            issue(14 + m); st["issued"] = 15 + m
    for m in (2, 3):
        w(m); QK(m)
    SMA(4); SMB(); SMC()
    for m in (4, 5, 6, 7):
        w(m); PV(m)
    for m in (8, 9, 10, 11):
        w(m); QK(m)
    SMA(4); SMB(); SMC()
    g.c("row sums across the four key groups; publish (max, sum) and this wave's view of the counter to LDS")
    g(f"v_mov_b32 v{vT1}, v{vL}")
    g("s_waitcnt lgkmcnt(0)")
    g(f"s_and_b32 s{sChk}, s{sChk}, 0xffffff")
    g(f"v_permlane32_swap_b32 v{vL}, v{vT1}")
    g(f"s_cmp_eq_u32 s{sChk}, s{sExp}")
    g(f"s_cselect_b32 s{sOK}, 1, 0")
    g(f"v_add_f32 v{vL}, v{vL}, v{vT1}")
    g(f"v_mov_b32 v{vT1}, v{vL}")
    g(f"v_mov_b32 v{vM}, s{sOK}")
    g("s_nop 0")
    g(f"v_permlane16_swap_b32 v{vL}, v{vT1}")
    g("s_nop 1")
    g(f"v_add_f32 v{vL}, v{vL}, v{vT1}")
    g("s_mov_b64 exec, 0xf")
    g(f"ds_write_b64 v{vLM}, {vr(vMc,2)} offset:{LDS_ML}")
    g(f"ds_write_b32 v{vLK}, v{vM} offset:{LDS_OK}")
    g("s_mov_b64 exec, -1")
    g("s_nop 3")
    for m in (12, 13, 14, 15):
        w(m); PV(m)
    if stamps:
        g(f"s_memrealtime s[{sT0+4}:{sT0+5}]")
    def round_loads(extra=0):
        for k in (1, 2, 3):
            so = f"s{sSl+k}"
            if extra:
                g(f"s_add_u32 s{sTmp}, s{sSl+k}, {extra}"); so = f"s{sTmp}"
            g(f"buffer_load_dwordx2 {vr(vR+4*(k-1),2)}, v{vOo}, s[{sW}:{sW+3}], {so} offen sc1")
            g(f"buffer_load_dwordx2 {vr(vR+4*(k-1)+2,2)}, v{vMo}, s[{sW}:{sW+3}], {so} offen offset:2048 sc1")
    def publish(flags="", extra=0):
        so = f"s{sSl}"
        if extra:
            g(f"s_add_u32 s{sTmp}, s{sSl}, {extra}"); so = f"s{sTmp}"
        g(f"buffer_store_dwordx2 {vr(vP,2)}, v{vOo}, s[{sW}:{sW+3}], {so} offen {flags}")
        g("s_mov_b64 exec, 0x55")
        g(f"buffer_store_dwordx2 {vr(vP+2,2)}, v{vMo}, s[{sW}:{sW+3}], {so} offen offset:2048 {flags}")
        g("s_mov_b64 exec, -1")
    def round_check(target_ok):
        g(f"v_max3_u32 v{vT0}, v{vR}, v{vR+1}, v{vR+2}")
        g(f"v_max3_u32 v{vT1}, v{vR+3}, v{vR+4}, v{vR+5}")
        g(f"v_max3_u32 v{vT0}, v{vT0}, v{vR+6}, v{vR+7}")
        g(f"v_max3_u32 v{vT1}, v{vT1}, v{vR+8}, v{vR+9}")
        g(f"v_max3_u32 v{vT0}, v{vT0}, v{vR+10}, v{vR+11}")
        g(f"v_max_u32 v{vT0}, v{vT0}, v{vT1}")
        g(f"v_cmp_eq_u32 vcc, -1, v{vT0}")
        g(f"s_cbranch_vccz {target_ok}")
    g(f"s_cmp_eq_u32 s{sOK}, 0")
    g("s_cbranch_scc1 L_noearly")
    g.c("early look at the other three partials (valid: all four slots were marked empty before)")
    round_loads()
    g("s_branch L_wr")
    g.lab("L_noearly")
    g("s_nop 7")
    g.lab("L_wr")
    g(f"ds_write_b128 v{vLO}, {vr(vO,4)}")
    g(f"ds_write_b128 v{vLO}, {vr(vO+4,4)} offset:1024")
    vML = vB; vOw = vB + 8; vOKs = vQ
    g("s_waitcnt lgkmcnt(0)")
    g("s_barrier")
    g(f"ds_read_b128 {vr(vML,4)}, v{vLH} offset:{LDS_ML}")
    g(f"ds_read_b128 {vr(vML+4,4)}, v{vLH} offset:{LDS_ML+16}")
    g(f"ds_read_b128 {vr(vOKs,4)}, v{vZero} offset:{LDS_OK}")
    for wv in range(NW):
        g(f"ds_read_b64 {vr(vOw+2*wv,2)}, v{vOo} offset:{wv*2048}")
    g(f"s_mov_b32 s{sTmp}, 0xfffffffe")
    g("s_waitcnt lgkmcnt(4)")
    g(f"v_max_f32 v{vP+2}, v{vML}, v{vML+2}")
    g(f"v_and_b32 v{vOKs}, v{vOKs}, v{vOKs+1}")
    g(f"v_max3_f32 v{vP+2}, v{vP+2}, v{vML+4}, v{vML+6}")
    g(f"v_and_b32 v{vOKs+2}, v{vOKs+2}, v{vOKs+3}")
    for wv in range(NW):
        g(f"v_sub_f32 v{vML+2*wv}, v{vML+2*wv}, v{vP+2}")
    g(f"v_and_b32 v{vOKs}, v{vOKs}, v{vOKs+2}")
    for wv in range(NW):
        g(f"v_exp_f32 v{vML+2*wv}, v{vML+2*wv}")
    g(f"v_readfirstlane_b32 s{sOK}, v{vOKs}")
    g(f"v_mul_f32 v{vP+3}, v{vML}, v{vML+1}")
    for wv in range(1, NW):
        g(f"v_fmac_f32 v{vP+3}, v{vML+2*wv}, v{vML+2*wv+1}")
    g("s_waitcnt lgkmcnt(0)")
    g(f"v_mul_f32 v{vP}, v{vML}, v{vOw}")
    g(f"v_mul_f32 v{vP+1}, v{vML}, v{vOw+1}")
    for wv in range(1, NW):
        g(f"v_fmac_f32 v{vP}, v{vML+2*wv}, v{vOw+2*wv}")
        g(f"v_fmac_f32 v{vP+1}, v{vML+2*wv}, v{vOw+2*wv+1}")
    for r in (2, 3, 0, 1):
        g(f"v_min_u32 v{vP+r}, s{sTmp}, v{vP+r}")
    g(f"s_cmp_eq_u32 s{sOK}, 0")
    g("s_cbranch_scc1 L_slow")
    g("s_waitcnt vmcnt(0)")
    round_check("L_final")
    publish()
    round_loads()
    g("s_waitcnt vmcnt(0)")
    round_check("L_final")
    g.lab("L_round2")
    g.c("own partial is visible now: if another one is still missing, its owner will see ours and finish the job")
    round_loads()
    g("s_waitcnt vmcnt(0)")
    round_check("L_final")
    g("s_branch L_fin")
    g.lab("L_slow")
    g.c("placement unknown or different XCCs: publish in both regions, then one returning atomic decides")
    publish()
    publish("sc1", R2)
    g("s_waitcnt vmcnt(0)")
    g("s_barrier")
    g(f"s_cmp_lg_u32 s{sWave}, 0")
    g("s_cbranch_scc1 L_noatom")
    g("s_mov_b64 exec, 1")
    g(f"v_mov_b32 v{vT0}, 0x1000000")
    g(f"s_lshl_b32 s{sTmp}, s{sGrp}, 2")
    g(f"buffer_atomic_add v{vT0}, v{vZero}, s[{sDv}:{sDv+3}], s{sTmp} offen sc0")
    g("s_waitcnt vmcnt(0)")
    g(f"ds_write_b32 v{vZero}, v{vT0} offset:{LDS_FLAG}")
    g("s_mov_b64 exec, -1")
    g("s_waitcnt lgkmcnt(0)")
    g.lab("L_noatom")
    g("s_barrier")
    g(f"ds_read_b32 v{vT0}, v{vZero} offset:{LDS_FLAG}")
    g("s_waitcnt lgkmcnt(0)")
    g(f"v_readfirstlane_b32 s{sChk}, v{vT0}")
    g("s_nop 3")
    g(f"s_and_b32 s{sTmp}, s{sChk}, 0xffffff")
    g(f"s_cmp_eq_u32 s{sTmp}, s{sExp}")
    g("s_cbranch_scc1 L_round2")
    g(f"s_lshr_b32 s{sTmp}, s{sChk}, 24")
    g(f"s_cmp_lg_u32 s{sTmp}, 3")
    g("s_cbranch_scc1 L_fin")
    round_loads(R2)
    g("s_waitcnt vmcnt(0)")
    g.lab("L_final")
    R = lambda k, r: (vP + r) if k == 0 else (vR + 4 * (k - 1) + r)
    g(f"v_max_f32 v{vMc}, v{R(0,2)}, v{R(1,2)}")
    g(f"v_max3_f32 v{vMc}, v{vMc}, v{R(2,2)}, v{R(3,2)}")
    for k in range(4):
        g(f"v_sub_f32 v{R(k,2)}, v{R(k,2)}, v{vMc}")
    for k in range(4):
        g(f"v_exp_f32 v{R(k,2)}, v{R(k,2)}")
    g("s_nop 0")
    for r in (3, 0, 1):
        for k in range(4):
            g(f"v_mul_f32 v{R(k,r)}, v{R(k,r)}, v{R(k,2)}")
    for r in (3, 0, 1):
        g(f"v_add_f32 v{R(0,r)}, v{R(0,r)}, v{R(1,r)}")
        g(f"v_add_f32 v{R(2,r)}, v{R(2,r)}, v{R(3,r)}")
    g(f"v_add_f32 v{R(0,3)}, v{R(0,3)}, v{R(2,3)}")
    g(f"v_rcp_f32 v{vL}, v{R(0,3)}")
    g(f"v_add_f32 v{R(0,0)}, v{R(0,0)}, v{R(2,0)}")
    g(f"v_add_f32 v{R(0,1)}, v{R(0,1)}, v{R(2,1)}")
    g(f"v_mul_f32 v{R(0,0)}, v{R(0,0)}, v{vL}")
    g(f"v_mul_f32 v{R(0,1)}, v{R(0,1)}, v{vL}")
    g(f"v_cvt_pk_bf16_f32 v{R(0,0)}, v{R(0,0)}, v{R(0,1)}")
    g(f"buffer_store_short v{R(0,0)}, v{vOutA}, s[{sOut}:{sOut+3}], 0 offen")
    g(f"buffer_store_short_d16_hi v{R(0,0)}, v{vOutA}, s[{sOut}:{sOut+3}], 0 offen offset:16")
    g.L.append("; WARM_END")
    g.lab("L_fin")
    if stamps:
        g(f"s_memrealtime s[{sT0+6}:{sT0+7}]")
        g(f"s_getreg_b32 s{sT0+8}, hwreg(HW_REG_XCC_ID)")
        g(f"s_mov_b32 s{sT0+9}, s{sOK}")
        g("s_waitcnt lgkmcnt(0)")
        g(f"s_mul_i32 s{sTmp}, s2, {NW}")
        g(f"s_add_u32 s{sTmp}, s{sTmp}, s{sWave}")
        g(f"s_lshl_b32 s{sTmp}, s{sTmp}, 6")
        g(f"s_add_u32 s{sTmp}, s{sTmp}, {STBASE}")
        g("s_mov_b64 exec, 1")
        for j in range(10):
            g(f"v_mov_b32 v{vKV+j}, s{sT0+j}")
        g(f"v_mov_b32 v{vKV+12}, 0")
        g(f"buffer_store_dwordx4 {vr(vKV,4)}, v{vKV+12}, s[{sW}:{sW+3}], s{sTmp} offen")
        g(f"buffer_store_dwordx4 {vr(vKV+4,4)}, v{vKV+12}, s[{sW}:{sW+3}], s{sTmp} offen offset:16")
        g(f"buffer_store_dwordx2 {vr(vKV+8,2)}, v{vKV+12}, s[{sW}:{sW+3}], s{sTmp} offen offset:32")
    g.lab("L_done")
    g("s_endpgm")
    g.lab("L_helper")
    g.c("helper wave: mark this workgroup's partial slot as empty, then count this workgroup (and its XCC) in")
    g("s_load_dwordx4 s[12:15], s[0:1], 32")
    g(f"s_getreg_b32 s{sExp}, hwreg(HW_REG_XCC_ID, 0, 4)")
    g(f"v_and_b32 v{vVoff}, 63, v0")
    g(f"v_lshlrev_b32 v{vVoff}, 4, v{vVoff}")
    for r in range(4):
        g(f"v_mov_b32 v{vS+r}, -1")
    g(f"s_cmp_gt_u32 s{sExp}, 7")
    g("s_cbranch_scc1 L_done")
    g(f"s_mul_i32 s{sExp}, s{sExp}, 3")
    g(f"s_lshl_b32 s{sExp}, 1, s{sExp}")
    g(f"s_lshl_b32 s{sTmp}, s{sGrp}, 2")
    g(f"s_lshl_b32 s{sSl}, s2, 12")
    g(f"s_mov_b32 s{sW+2}, {STBASE}")
    g(f"s_mov_b32 s{sW+3}, 0x20000")
    g("s_waitcnt lgkmcnt(0)")
    g(f"s_mov_b32 s{sW}, s14")
    g(f"s_mov_b32 s{sW+1}, s15")
    for wv in range(2):
        g(f"buffer_store_dwordx4 {vr(vS,4)}, v{vVoff}, s[{sW}:{sW+3}], s{sSl} offen offset:{wv*1024}")
    g("s_mov_b64 exec, 0xff")
    g(f"buffer_store_dwordx4 {vr(vS,4)}, v{vVoff}, s[{sW}:{sW+3}], s{sSl} offen offset:2048")
    g(f"s_add_u32 s{sDp}, s12, s{sTmp}")
    g(f"s_addc_u32 s{sDp+1}, s13, 0")
    g("s_waitcnt vmcnt(0)")
    g(f"s_atomic_add s{sExp}, s[{sDp}:{sDp+1}], 0x0")
    if warm:
        g.c("then walk the tail code (one branch per cache line, no lane active) so it is in the instruction cache")
        g("s_waitcnt lgkmcnt(0)")
        g("s_mov_b64 exec, -1")
        g(f"s_lshl_b32 s{sTmp}, s{sGrp}, 21")
        g(f"s_add_u32 s{sK}, s6, s{sTmp}")
        g(f"s_addc_u32 s{sK+1}, s7, 0")
        g(f"s_add_u32 s{sV}, s8, s{sTmp}")
        g(f"s_addc_u32 s{sV+1}, s9, 0")
        tail_setup(True)
        g("s_mov_b64 exec, 0")
        g("s_branch L_hop0")
    else:
        g("s_endpgm")
    g.lab("L_codeend")
    g.L.append('.section .rodata,"a"')
    g.L.append(".p2align 6")
    g.L.append(f".amdhsa_kernel {NAME}_kernel")
    g.L.append(f"  .amdhsa_next_free_vgpr {nv}")
    g.L.append(f"  .amdhsa_next_free_sgpr 92")
    g.L.append(f"  .amdhsa_accum_offset {(nv+3)//4*4}")
    g.L.append("  .amdhsa_group_segment_fixed_size 0")
    g.L.append("  .amdhsa_kernarg_size 48")
    g.L.append("  .amdhsa_user_sgpr_count 2")
    g.L.append("  .amdhsa_user_sgpr_kernarg_segment_ptr 1")
    g.L.append("  .amdhsa_system_sgpr_workgroup_id_x 1")
    g.L.append(".end_amdhsa_kernel")
    if warm:
        return add_hops(g.L, warm)
    return g.text()

def add_hops(L, spacing):
    import subprocess, re
    L = "\n".join(L).split("\n")
    def is_insn(l):
        t = l.strip()
        return bool(t) and not t.startswith(";") and not t.startswith(".") and not t.endswith(":")
    tmp = [l if "L_hop0" not in l else "    s_branch L_done" for l in L]
    open("hop.s", "w").write("\n".join(tmp) + "\n")
    subprocess.run(["clang", "-x", "assembler", "-target", "amdgcn-amd-amdhsa", "-mcpu=gfx950", "-c", "hop.s", "-o", "hop.o"], check=True)
    d = subprocess.run(["llvm-objdump", "-d", "--mcpu=gfx950", "hop.o"], capture_output=True, text=True).stdout
    sizes = [4 * len(m.group(1).split()) for m in re.finditer(r"// [0-9A-F]{12}: ([0-9A-F ]+)$", d, re.M)]
    out = []; k = 0; inside = False; since = None; nh = 0
    txt_end = [i for i, l in enumerate(L) if l.startswith(".section")][0]
    for i, l in enumerate(L):
        if l.startswith("; WARM_BEGIN"):
            inside = True; since = 1 << 30; continue
        if l.startswith("; WARM_END"):
            inside = False
            out.append(f"L_hop{nh}:"); out.append("    s_cbranch_execz L_done"); continue
        if i < txt_end and is_insn(l):
            sz = sizes[k]; k += 1
            if inside:
                if since + sz > spacing:
                    out.append(f"L_hop{nh}:"); out.append(f"    s_cbranch_execz L_hop{nh+1}"); nh += 1; since = 4
                since += sz
        out.append(l)
    assert k == len(sizes), (k, len(sizes))
    return "\n".join(out) + "\n"

if __name__ == "__main__":
    ap = argparse.ArgumentParser()
    ap.add_argument("-o", default="cdna_kernels/" + NAME + ".s")
    ap.add_argument("--a", type=int, default=5)
    ap.add_argument("--waits", default="4")
    ap.add_argument("--ld", default="nt")
    ap.add_argument("--stamps", action="store_true")
    ap.add_argument("--forcefb", action="store_true")
    ap.add_argument("--chkit", type=int, default=8)
    ap.add_argument("--tog", type=lambda x: int(x, 0), default=0xc000)
    ap.add_argument("--cpf", action="store_true")
    ap.add_argument("--warm", type=int, default=0)
    ap.add_argument("--flat", action="store_true")
    ap.add_argument("--noimm", action="store_true")
    ap.add_argument("--tau", type=int, default=0)
    ap.add_argument("--t00", type=int, default=70)
    ap.add_argument("--wlo", default="4")
    ap.add_argument("--whi", default="5")
    ap.add_argument("--org1", action="store_true")
    ap.add_argument("--selfcal", action="store_true")
    ap.add_argument("--dtau", type=int, default=0)
    ap.add_argument("--dl", type=int, default=0)
    ap.add_argument("--anchors", default="1,5,9")
    ap.add_argument("--fcap", type=int, default=14)
    ap.add_argument("--fixtau", action="store_true")
    a = ap.parse_args()
    w = [int(x) for x in a.waits.split(",")]
    open(a.o, "w").write(gen(a.a, w, a.ld.replace("_", " ").replace("none", ""), a.stamps, a.forcefb, a.chkit, a.tog, a.cpf, a.warm, a.flat, a.noimm, a.tau, a.t00, [int(x) for x in a.wlo.split(",")], [int(x) for x in a.whi.split(",")], a.org1, a.selfcal, a.dtau, a.dl, tuple(int(x) for x in a.anchors.split(",")), a.fcap, a.fixtau))
```

```python
import sys, math, argparse
from gen import HDR, NAME, G, vr, f2u

def gen(A=6, waits=(4, 4, 4, 5), ldflags="nt", stamps=False, forcefb=False, chkit=8, tog=0xc000, cpf=False, warm=0, flat=False, noimm=False, tau=0, t00=95, wlo=None, whi=None, org1=False, selfcal=False, dtau=0, dl=0, anchors=(1,5,9), fcap=14, fixtau=False, emode=0, warmx=False):
    g = G()
    NW = 4; NSPLIT = 4; NG = 64
    NWG = NG * NSPLIT
    T = 32
    GB = 2 << 20
    NT = 320
    LDS_ML = NW * 2048
    LDS_OK = LDS_ML + 4 * NW * 8
    LDS_FLAG = LDS_OK + 16
    LDS = LDS_FLAG + 16
    cscale = (128 ** -0.5) * math.log2(math.e)
    assert all(w <= A - 1 for w in waits) and A <= 12
    R2 = NWG * 4096
    STBASE = 2 * NWG * 4096

    vKoff = 1; vVoff = 2; vM = 3; vMc = 4; vL = 5; vMask0 = 6; vMask1 = 7
    vT0 = 8; vT1 = 9; vA = 10; vMcN = 11
    vQ = 12; vO = 16; vS = 24; vB = 40; vKV = 58
    vR = vS; vP = vS + 12
    e = vKV + 64
    vOo = e; vMo = e + 1; vOutA = e + 2; vLO = e + 3; vLM = e + 4; vLH = e + 5; vLK = e + 6; vZero = e + 7; vLane16 = e + 8; vWx = e + 9
    nv = e + 10
    def slot(n): return vKV + (n % 16) * 4
    def X(i): return vB + 2 + 4 * i
    S = lambda i, r: vS + 4 * i + r

    sK = 16; sV = 20; sQ = 24; sW = 28; sOut = 32; sDv = 36
    sGrp = 40; sSplit = 41; sWave = 42; sKo = 43; sVo = 44; sC = 45; sIt = 46; sTmp = 47; sTmp2 = 48; sChk = 49
    sT0 = 50
    sDp = 60; sSl = 62; sOK = 67; sExp = 68; sCp = 4; sNow = 70; sTg = 72; sTau = 73; sLn = 74; sRep = 75; sMp = 76; sAcc = 77; sMx = 78; sPw = 79; sLv = 80; sTmp2x = 88

    g.L.append(HDR.rstrip())
    if stamps: g.L.append(f"; STAMPBASE {STBASE}")
    g.L.append(f"; @launch grid=({NWG},1,1) block=({NT},1,1) lds={LDS}")
    g.L.append("""; ---------------------------------------------------------------------------------------------
; ---------------------------------------------------------------------------------------------""")
    g.L.append('.amdgcn_target "amdgcn-amd-amdhsa--gfx950"')
    g.L.append(".text")
    g.L.append(f".globl {NAME}_kernel")
    g.L.append(".p2align 8")
    g.L.append(f".type {NAME}_kernel,@function")
    g.lab(f"{NAME}_kernel")
    if stamps:
        g(f"s_memrealtime s[{sT0}:{sT0+1}]")
    g(f"s_cmpk_ge_u32 s2, {NWG}")
    g("s_cbranch_scc1 L_done")
    g(f"s_load_dwordx2 s[{sK}:{sK+1}], s[0:1], 8")
    if tau and not org1: g(f"s_memrealtime s[{sNow}:{sNow+1}]")
    g(f"s_load_dwordx2 s[{sV}:{sV+1}], s[0:1], 16")
    g(f"s_load_dwordx2 s[{sQ}:{sQ+1}], s[0:1], 0")
    g.c("wg = 8*jj + x ; split = jj&3 ; group = x + 8*(jj>>2)  (a group's 4 workgroups usually share an XCD: speed only)")
    g.c("byte offset of the first tile: group*2MiB + (4*split + wave)*4KiB  (tile = 16 keys; wave part lives in the VGPR offset)")
    g(f"s_and_b32 s{sGrp}, s2, 7")
    g(f"s_lshr_b32 s{sTmp}, s2, 5")
    g(f"s_lshl3_add_u32 s{sGrp}, s{sTmp}, s{sGrp}")
    g(f"s_and_b32 s{sTmp}, s2, 24")
    g(f"s_lshl_b32 s{sKo}, s{sGrp}, 21")
    g(f"s_lshl_b32 s{sTmp}, s{sTmp}, 11")
    g(f"s_or_b32 s{sKo}, s{sKo}, s{sTmp}")
    g(f"s_brev_b32 s{sK+2}, 16                     ; 128 MiB")
    g(f"s_lshl_b32 s{sK+3}, 1, 17                  ; 0x20000")
    g.c("lane l = 16g + 4a + b.  K: key a, bytes 64g+16b of the row.  Q: head b, bytes 64g+16a.  V: linear")
    g(f"v_readfirstlane_b32 s{sWave}, v0")
    g(f"v_and_b32 v{vT0}, 3, v0")
    g(f"v_and_b32 v{vT1}, 0xcc, v0")
    g(f"v_and_b32 v{vA}, 48, v0")
    g(f"v_lshlrev_b32 v{vKoff}, 4, v{vT0}")
    g(f"v_lshl_or_b32 v{vKoff}, v{vT1}, 6, v{vKoff}")
    g(f"v_lshl_or_b32 v{vKoff}, v{vA}, 2, v{vKoff}")
    g(f"s_cmpk_ge_u32 s{sWave}, 256")
    g("s_cbranch_scc1 L_helper")
    stride = 16 * 4096
    def issue(n):
        p = n % 8
        so, vo, srd = (sKo, vKoff, sK) if p < 4 else (sVo, vVoff, sV)
        g(f"buffer_load_dwordx4 {vr(slot(n),4)}, v{vo}, s[{srd}:{srd+3}], s{so} offen {ldflags}")
        if p % 4 == 3:
            g(f"s_add_u32 s{so}, s{so}, {stride-3072}")
            if tog: g(f"s_xor_b32 s{so}, s{so}, {tog:#x}")
        else:
            g(f"s_addk_i32 s{so}, 1024")
    g("s_waitcnt lgkmcnt(0)")
    g(f"buffer_load_dwordx4 {vr(slot(0),4)}, v{vKoff}, s[{sK}:{sK+3}], s{sKo} offen {ldflags}")
    g(f"s_mov_b32 s{sVo}, s{sKo}")
    g(f"s_addk_i32 s{sKo}, 1024")
    g(f"s_lshr_b32 s{sWave}, s{sWave}, 6")
    g(f"v_bfe_u32 v{vT1}, v0, 2, 2")
    g(f"v_lshlrev_b32 v{vMcN}, 8, v{vT0}")
    g(f"v_lshl_or_b32 v{vMcN}, v{vT1}, 4, v{vMcN}")
    g(f"v_lshl_or_b32 v{vMcN}, v{vA}, 2, v{vMcN}")
    g(f"s_lshl_b32 s{sTmp2}, s{sGrp}, 10")
    g(f"s_mov_b32 s{sQ+2}, 0x10000")
    g(f"s_mov_b32 s{sQ+3}, s{sK+3}")
    g(f"buffer_load_dwordx4 {vr(vQ,4)}, v{vMcN}, s[{sQ}:{sQ+3}], s{sTmp2} offen")
    g(f"v_and_b32 v{vLane16}, 63, v0")
    issue(1)
    g(f"v_and_b32 v{vVoff}, 0xc0, v0")
    issue(2)
    g(f"v_lshlrev_b32 v{vLane16}, 4, v{vLane16}       ; lane*16")
    issue(3)
    g(f"v_lshl_or_b32 v{vVoff}, v{vVoff}, 6, v{vLane16}")
    g(f"s_mov_b32 s{sV+2}, s{sK+2}")
    g(f"s_mov_b32 s{sV+3}, s{sK+3}")
    for n in range(4, A):
        issue(n)
    g("s_load_dwordx2 s[10:11], s[0:1], 24          ; out")
    g("s_load_dwordx4 s[12:15], s[0:1], 32")
    if cpf:
        g.c("pull this kernel's own code into L2 early")
        g(f"s_getpc_b64 s[{sCp}:{sCp+1}]")
        g.lab("L_pc")
        g(f"s_sub_u32 s{sCp}, s{sCp}, L_pc-{NAME}_kernel")
        g(f"s_subb_u32 s{sCp+1}, s{sCp+1}, 0")
        g(f"s_mov_b32 s{sCp+2}, L_codeend-{NAME}_kernel")
        g(f"s_mov_b32 s{sCp+3}, 0x20000")
        g(f"v_lshlrev_b32 v{vM}, 4, v0")
        g(f"buffer_load_dwordx4 {vr(slot(12),4)}, v{vM}, s[{sCp}:{sCp+3}], 0 offen")
    g(f"s_mov_b32 s{sC}, {f2u(cscale):#x}           ; D^-0.5 * log2(e)")
    g(f"v_mov_b32 v{vM}, 0xff800000")
    g(f"v_mov_b32 v{vMc}, v{vM}")
    g(f"v_mov_b32 v{vL}, 0")
    for r in range(8):
        g(f"v_mov_b32 v{vO+r}, 0")
    for r in range(18):
        g(f"v_mov_b32 v{vB+r}, 0")
    for r in range(8):
        g(f"v_mov_b32 v{slot(14)+r}, 0")
    g.c("P placement masks: column group a selects bf16 slot a of the B fragment")
    g(f"v_and_b32 v{vT0}, 1, v{vT1}")
    g(f"v_lshlrev_b32 v{vT0}, 4, v{vT0}")
    g(f"v_mov_b32 v{vA}, 0xffff")
    g(f"v_lshlrev_b32 v{vA}, v{vT0}, v{vA}")
    g(f"v_cmp_gt_u32 vcc, 2, v{vT1}")
    g(f"s_mov_b32 s{sIt}, {T//2}")
    g(f"s_mov_b32 s{sChk}, 0")
    g(f"v_cndmask_b32 v{vMask0}, 0, v{vA}, vcc")
    g(f"v_cndmask_b32 v{vMask1}, v{vA}, 0, vcc")
    if stamps:
        g(f"s_waitcnt vmcnt({A-1})")
        g(f"s_memrealtime s[{sT0+2}:{sT0+3}]")
    def QK(m):
        i = m % 8
        g(f"v_mfma_f32_16x16x32_bf16 {vr(S(i,0),4)}, {vr(slot(m),4)}, {vr(vQ,4)}, 0")
    def PV(mv):
        i = mv % 8 - 4
        g(f"v_mfma_f32_16x16x32_bf16 {vr(vO,4)}, {vr(slot(mv),4)}, {vr(X(i),4)}, {vr(vO,4)}")
        g(f"v_mfma_f32_16x16x32_bf16 {vr(vO+4,4)}, {vr(slot(mv),4)}, {vr(X(i)-2,4)}, {vr(vO+4,4)}")
    def SMA(nop=3):
        g(f"s_nop {nop}")
        for i in range(4):
            g(f"v_add_f32_dpp v{S(i,1)}, v{S(i,2)}, v{S(i,0)} row_ror:8 row_mask:0xf bank_mask:0x1")
        for i in range(4):
            g(f"v_add_f32_dpp v{S(i,1)}, v{S(i,0)}, v{S(i,2)} row_ror:8 row_mask:0xf bank_mask:0x4")
        for i in range(4):
            g(f"v_add_f32_dpp v{S(i,1)}, v{S(i,1)}, v{S(i,3)} row_ror:8 row_mask:0xf bank_mask:0x8")
        for i in range(4):
            g(f"v_add_f32_dpp v{S(i,1)}, v{S(i,3)}, v{S(i,1)} row_ror:8 row_mask:0xf bank_mask:0x2")
        for i in range(4):
            g(f"v_add_f32_dpp v{S(i,0)}, v{S(i,1)}, v{S(i,1)} row_ror:4 row_mask:0xf bank_mask:0xf")
    def SMB():
        g(f"v_max3_f32 v{vT0}, v{S(0,0)}, v{S(1,0)}, v{S(2,0)}")
        g(f"v_max3_f32 v{vT0}, v{vT0}, v{S(3,0)}, v{vM}")
        g(f"v_mov_b32 v{vT1}, v{vT0}")
        g("s_nop 1")
        g(f"v_permlane32_swap_b32 v{vT0}, v{vT1}")
        g("s_nop 1")
        g(f"v_max_f32 v{vT0}, v{vT0}, v{vT1}")
        g(f"v_mov_b32 v{vT1}, v{vT0}")
        g("s_nop 1")
        g(f"v_permlane16_swap_b32 v{vT0}, v{vT1}")
        g("s_nop 1")
        g(f"v_max_f32 v{vM}, v{vT0}, v{vT1}")
        g(f"v_mul_f32 v{vMcN}, s{sC}, v{vM}")
        g(f"v_sub_f32 v{vA}, v{vMc}, v{vMcN}")
        g(f"v_exp_f32 v{vA}, v{vA}")
        for i in range(4):
            g(f"v_fma_f32 v{S(i,0)}, v{S(i,0)}, s{sC}, -v{vMcN}")
        for i in range(4):
            g(f"v_exp_f32 v{S(i,0)}, v{S(i,0)}")
        g(f"v_mov_b32 v{vMc}, v{vMcN}")
    def SMC():
        for r in range(8):
            g(f"v_mul_f32 v{vO+r}, v{vO+r}, v{vA}")
        for i in range(4):
            g(f"v_cvt_pk_bf16_f32 v{S(i,1)}, v{S(i,0)}, v{S(i,0)}")
        for i in range(4):
            g(f"v_and_b32 v{X(i)}, v{S(i,1)}, v{vMask0}")
            g(f"v_and_b32 v{X(i)+1}, v{S(i,1)}, v{vMask1}")
        g(f"v_fma_f32 v{vL}, v{vL}, v{vA}, v{S(0,0)}")
        g(f"v_add_f32 v{S(1,0)}, v{S(1,0)}, v{S(2,0)}")
        g(f"v_add_f32 v{vL}, v{vL}, v{S(3,0)}")
        g(f"v_add_f32 v{vL}, v{vL}, v{S(1,0)}")
    def compute(m):
        p = m % 8
        if p < 4: QK(m)
        if p in (0, 1): PV(m - 2 + 16)
        if p == 4: SMA()
        if p == 5: SMB()
        if p == 6: SMC(); PV(m - 2)
        if p == 7: PV(m - 2)
    if not tau:
        g.lab("L_loop")
        for m in range(16):
            g(f"s_waitcnt vmcnt({waits[m % len(waits)]})")
            issue(m + A)
            compute(m)
        g(f"s_sub_u32 s{sIt}, s{sIt}, 1")
        g(f"s_cmp_lg_u32 s{sIt}, 1")
        g("s_cbranch_scc1 L_loop")
    elif not selfcal:
        if org1:
            g(f"s_waitcnt vmcnt({A-1})")
            g(f"s_memrealtime s[{sNow}:{sNow+1}]")
        g("s_waitcnt lgkmcnt(0)")
        g(f"s_add_u32 s{sTg}, s{sNow}, {t00 & 0xffffffff}")
        def body(name, ws_):
            g.lab(name)
            for m in range(16):
                if m == 14:
                    g(f"s_memrealtime s[{sNow}:{sNow+1}]")
                g(f"s_waitcnt vmcnt({ws_[m % len(ws_)]})")
                issue(m + A)
                compute(m)
            g(f"s_sub_u32 s{sIt}, s{sIt}, 1")
            g(f"s_cmp_eq_u32 s{sIt}, 1")
            g("s_cbranch_scc1 L_last")
            g(f"s_add_u32 s{sTg}, s{sTg}, {tau}")
            g("s_waitcnt lgkmcnt(0)")
            g(f"s_sub_u32 s{sTmp}, s{sNow}, s{sTg}")
            g(f"s_cmp_gt_i32 s{sTmp}, 0")
        body("L_loop", wlo)
        g("s_cbranch_scc0 L_loop")
        body("L_loopB", whi)
        g("s_cbranch_scc1 L_loopB")
        g("s_branch L_loop")
        g.lab("L_last")
    else:
        PACE = 3 << 20
        g("s_waitcnt lgkmcnt(0)")
        g(f"s_add_u32 s{sTg}, s{sNow}, {t00 & 0xffffffff}")
        g(f"s_movk_i32 s{sTau}, {tau}")
        g(f"s_mov_b32 s{sLn}, {PACE - 128}")
        g(f"s_lshl_b32 s{sPw}, s2, 2")
        g(f"s_add_u32 s{sPw}, s{sPw}, {PACE}")
        g(f"s_or_b32 s{sRep}, s{sWave}, s2")
        g(f"s_lshr_b32 s{sTmp}, s2, 3")
        g(f"s_or_b32 s{sRep}, s{sWave}, s{sTmp}")
        g(f"s_mov_b32 s{sMp}, 0")
        def body(name, ws_):
            g.lab(name)
            for m in range(16):
                if m == 14:
                    g(f"s_memrealtime s[{sNow}:{sNow+1}]")
                    g(f"s_load_dwordx8 s[{sLv}:{sLv+7}], s[14:15], s{sLn}")
                g(f"s_waitcnt vmcnt({ws_[m % len(ws_)]})")
                issue(m + A)
                compute(m)
        body("L_loop", wlo)
        g("s_branch L_ctl")
        body("L_loopB", whi)
        g.lab("L_ctl")
        g(f"s_sub_u32 s{sIt}, s{sIt}, 1")
        g(f"s_cmp_eq_u32 s{sIt}, 1")
        g("s_cbranch_scc1 L_last")
        g(f"s_add_u32 s{sTg}, s{sTg}, s{sTau}")
        g(f"s_addk_i32 s{sLn}, 128")
        g("s_waitcnt lgkmcnt(0)")
        g(f"s_cmp_lg_u32 s{sRep}, 0")
        g("s_cbranch_scc1 L_nopub")
        g(f"s_mov_b32 s{sTmp}, s{sNow}")
        g(f"s_atomic_swap s{sTmp}, s[14:15], s{sPw}")
        g(f"s_addk_i32 s{sPw}, 128")
        g.lab("L_nopub")
        a0 = anchors[0]; step = anchors[1] - anchors[0]
        assert all(anchors[i+1]-anchors[i] == step for i in range(len(anchors)-1)) and step in (2, 4)
        g(f"s_and_b32 s{sTmp2x}, s{sIt}, {step-1}")
        g(f"s_cmp_lg_u32 s{sTmp2x}, {(14 - a0) % step}")
        g("s_cbranch_scc1 L_dec")
        g(f"s_cmp_lt_u32 s{sIt}, {14 - (a0 if fixtau else anchors[-1])}")
        g("s_cbranch_scc1 L_dec")
        g(f"s_cmp_gt_u32 s{sIt}, {14 - a0}")
        g("s_cbranch_scc1 L_dec")
        g(f"s_mov_b32 s{sAcc}, 0")
        g(f"s_mov_b32 s{sMx}, 0")
        for k in range(8):
            g(f"s_sub_u32 s{sLv+k}, s{sNow}, s{sLv+k}")
            g(f"s_add_u32 s{sAcc}, s{sAcc}, s{sLv+k}")
            g(f"s_max_u32 s{sMx}, s{sMx}, s{sLv+k}")
        g(f"s_cmpk_gt_u32 s{sMx}, 1000")
        g("s_cbranch_scc1 L_bad")
        g(f"s_lshr_b32 s{sAcc}, s{sAcc}, 3")
        g(f"s_sub_u32 s{sAcc}, s{sNow}, s{sAcc}")
        g(f"s_cmp_eq_u32 s{sMp}, 0")
        g("s_cbranch_scc1 L_notau")
        g(f"s_sub_u32 s{sTau}, s{sAcc}, s{sMp}")
        g(f"s_lshr_b32 s{sTau}, s{sTau}, {1 if step == 2 else 2}")
        if dtau: g(f"s_addk_i32 s{sTau}, {dtau}")
        g.lab("L_notau")
        g(f"s_mov_b32 s{sMp}, s{sAcc}")
        g(f"s_add_u32 s{sTg}, s{sAcc}, s{sTau}")
        if dl: g(f"s_addk_i32 s{sTg}, {dl}")
        g("s_branch L_dec")
        g.lab("L_bad")
        g(f"s_mov_b32 s{sMp}, 0")
        g.lab("L_dec")
        g(f"s_sub_u32 s{sTmp2x}, s{sNow}, s{sTg}")
        g(f"s_cmp_gt_i32 s{sTmp2x}, 0")
        g("s_cbranch_scc1 L_loopB")
        g("s_branch L_loop")
        g.lab("L_last")
    g.c("last two tiles: slightly deeper window, no loads past the end")
    issued = A
    for n in range(A, fcap):
        issue(n); issued = n + 1
    def tail_setup(helper=False):
        g.c("everything the tail needs (all loads are in flight meanwhile)")
        g("s_waitcnt lgkmcnt(0)")
        g(f"s_lshl_b32 s{sTmp}, s{sGrp}, 2")
        g(f"s_add_u32 s{sDp}, s12, s{sTmp}")
        g(f"s_addc_u32 s{sDp+1}, s13, 0")
        if chkit == 8 and not helper:
            g(f"s_load_dword s{sChk}, s[{sDp}:{sDp+1}], 0x0")
        g(f"s_mov_b32 s{sW}, s14")
        g(f"s_mov_b32 s{sW+1}, s15")
        g(f"s_mov_b32 s{sW+2}, {STBASE + (NWG*NW*64 if stamps else 0)}")
        g(f"s_mov_b32 s{sW+3}, 0x20000")
        g(f"s_add_u32 s{sOut}, s10, s{sTmp2}")
        g(f"s_addc_u32 s{sOut+1}, s11, 0")
        g(f"s_movk_i32 s{sOut+2}, 1024")
        g(f"s_mov_b32 s{sOut+3}, 0x20000")
        g(f"s_mov_b32 s{sDv}, s12")
        g(f"s_mov_b32 s{sDv+1}, s13")
        g(f"s_movk_i32 s{sDv+2}, 256")
        g(f"s_mov_b32 s{sDv+3}, 0x20000")
        g(f"s_lshl_b32 s{sSl}, s2, 12")
        for k in (1, 2, 3):
            g(f"s_xor_b32 s{sSl+k}, s{sSl}, {k*8*4096}")
        g.c("counter word expected when all four workgroups checked in from THIS XCC: 4 << (3*xcc); ids > 7 never match")
        g(f"s_getreg_b32 s{sExp}, hwreg(HW_REG_XCC_ID, 0, 4)")
        g(f"s_mul_i32 s{sTmp}, s{sExp}, 3")
        g(f"s_lshl_b32 s{sTmp}, 4, s{sTmp}")
        g(f"s_cmp_gt_u32 s{sExp}, 7")
        g(f"s_cselect_b32 s{sExp}, -1, s{sTmp}")
        if forcefb:
            g(f"s_mov_b32 s{sExp}, -1")
        g(f"v_lshlrev_b32 v{vOo}, 3, v0")
        g(f"v_bfe_u32 v{vLH}, v0, 1, 2")
        g(f"s_lshl_b32 s{sTmp}, s{sWave}, 5")
        g(f"v_lshl_add_u32 v{vMo}, v{vLH}, 3, s{sTmp}")
        g(f"v_lshlrev_b32 v{vOutA}, 8, v{vLH}")
        g(f"v_lshlrev_b32 v{vLH}, 5, v{vLH}")
        g(f"v_bfe_u32 v{vZero}, v0, 5, 2")
        g(f"v_lshl_add_u32 v{vOutA}, v{vZero}, 6, v{vOutA}")
        g(f"v_and_b32 v{vZero}, 1, v0")
        g(f"v_lshl_add_u32 v{vOutA}, v{vZero}, 5, v{vOutA}")
        g(f"v_bfe_u32 v{vZero}, v0, 7, 1")
        g(f"v_lshl_add_u32 v{vOutA}, v{vZero}, 3, v{vOutA}")
        g(f"v_bfe_u32 v{vZero}, v0, 3, 2")
        g(f"v_lshl_add_u32 v{vOutA}, v{vZero}, 1, v{vOutA}")
        g(f"v_mov_b32 v{vZero}, 0")
        g(f"s_lshl_b32 s{sTmp}, s{sWave}, 11")
        g(f"v_add_u32 v{vLO}, s{sTmp}, v{vLane16}")
        g(f"s_lshl_b32 s{sTmp}, s{sWave}, 3")
        g(f"v_lshl_add_u32 v{vLM}, v{vLane16}, 1, s{sTmp}")
        g(f"s_lshl_b32 s{sTmp}, s{sWave}, 2")
        g(f"v_mov_b32 v{vLK}, s{sTmp}")

    tail_setup()
    g.L.append("; WARM_BEGIN")
    st = {"issued": issued}
    xpos = None
    if warmx:
        g.c("touch the group's four partial slots (wave w -> slot split^w) so they are in L2 when the hand-off starts")
        g(f"s_lshl_b32 s{sTmp}, s{sWave}, 15")
        g(f"s_xor_b32 s{sTmp}, s{sTmp}, s{sSl}")
        g(f"v_lshlrev_b32 v{vT0}, 2, v{vLane16}")
        g(f"v_min_u32 v{vT0}, 0x840, v{vT0}")
        g(f"buffer_load_dword v{vWx}, v{vT0}, s[{sW}:{sW+3}], s{sTmp} offen sc1")
        xpos = issued
    def w(m):
        g(f"s_waitcnt vmcnt({st['issued'] - 1 - m + (1 if xpos is not None and m < xpos else 0)})")
        n = m + fcap
        if fcap < 14 and n <= 15 and n >= st["issued"]:
            issue(n); st["issued"] = n + 1
    for m in (0, 1):
        w(m); QK(m); PV(m + 14)
        if fcap >= 14:
            issue(14 + m); st["issued"] = 15 + m
    for m in (2, 3):
        w(m); QK(m)
    SMA(4); SMB(); SMC()
    for m in (4, 5, 6, 7):
        w(m); PV(m)
    for m in (8, 9, 10, 11):
        w(m); QK(m)
    SMA(4); SMB(); SMC()
    g.c("row sums across the four key groups; publish (max, sum) and this wave's view of the counter to LDS")
    g(f"v_mov_b32 v{vT1}, v{vL}")
    g("s_waitcnt lgkmcnt(0)")
    g(f"s_and_b32 s{sChk}, s{sChk}, 0xffffff")
    g(f"v_permlane32_swap_b32 v{vL}, v{vT1}")
    g(f"s_cmp_eq_u32 s{sChk}, s{sExp}")
    g(f"s_cselect_b32 s{sOK}, 1, 0")
    g(f"v_add_f32 v{vL}, v{vL}, v{vT1}")
    g(f"v_mov_b32 v{vT1}, v{vL}")
    g(f"v_mov_b32 v{vM}, s{sOK}")
    g("s_nop 0")
    g(f"v_permlane16_swap_b32 v{vL}, v{vT1}")
    g("s_nop 1")
    g(f"v_add_f32 v{vL}, v{vL}, v{vT1}")
    g("s_mov_b64 exec, 0xf")
    g(f"ds_write_b64 v{vLM}, {vr(vMc,2)} offset:{LDS_ML}")
    g(f"ds_write_b32 v{vLK}, v{vM} offset:{LDS_OK}")
    g("s_mov_b64 exec, -1")
    g("s_nop 3")
    for m in (12, 13, 14, 15):
        w(m); PV(m)
    if stamps:
        g(f"s_memrealtime s[{sT0+4}:{sT0+5}]")
    def round_loads(extra=0):
        for k in (1, 2, 3):
            so = f"s{sSl+k}"
            if extra:
                g(f"s_add_u32 s{sTmp}, s{sSl+k}, {extra}"); so = f"s{sTmp}"
            g(f"buffer_load_dwordx2 {vr(vR+4*(k-1),2)}, v{vOo}, s[{sW}:{sW+3}], {so} offen sc1")
            g(f"buffer_load_dwordx2 {vr(vR+4*(k-1)+2,2)}, v{vMo}, s[{sW}:{sW+3}], {so} offen offset:2048 sc1")
    def publish(flags="", extra=0):
        so = f"s{sSl}"
        if extra:
            g(f"s_add_u32 s{sTmp}, s{sSl}, {extra}"); so = f"s{sTmp}"
        g(f"buffer_store_dwordx2 {vr(vP,2)}, v{vOo}, s[{sW}:{sW+3}], {so} offen {flags}")
        g("s_mov_b64 exec, 0x55")
        g(f"buffer_store_dwordx2 {vr(vP+2,2)}, v{vMo}, s[{sW}:{sW+3}], {so} offen offset:2048 {flags}")
        g("s_mov_b64 exec, -1")
    def round_check(target_ok):
        g(f"v_max3_u32 v{vT0}, v{vR}, v{vR+1}, v{vR+2}")
        g(f"v_max3_u32 v{vT1}, v{vR+3}, v{vR+4}, v{vR+5}")
        g(f"v_max3_u32 v{vT0}, v{vT0}, v{vR+6}, v{vR+7}")
        g(f"v_max3_u32 v{vT1}, v{vT1}, v{vR+8}, v{vR+9}")
        g(f"v_max3_u32 v{vT0}, v{vT0}, v{vR+10}, v{vR+11}")
        g(f"v_max_u32 v{vT0}, v{vT0}, v{vT1}")
        g(f"v_cmp_eq_u32 vcc, -1, v{vT0}")
        g(f"s_cbranch_vccz {target_ok}")
    if emode < 2:
        g(f"s_cmp_eq_u32 s{sOK}, 0")
        g("s_cbranch_scc1 L_noearly")
        g.c("early look at the other three partials (valid: all four slots were marked empty before)")
        round_loads()
        g("s_branch L_wr")
        g.lab("L_noearly")
        g("s_nop 7")
        g.lab("L_wr")
    else:
        g("s_nop 7")
    g(f"ds_write_b128 v{vLO}, {vr(vO,4)}")
    g(f"ds_write_b128 v{vLO}, {vr(vO+4,4)} offset:1024")
    vML = vB; vOw = vB + 8; vOKs = vQ
    g("s_waitcnt lgkmcnt(0)")
    g("s_barrier")
    g(f"ds_read_b128 {vr(vML,4)}, v{vLH} offset:{LDS_ML}")
    g(f"ds_read_b128 {vr(vML+4,4)}, v{vLH} offset:{LDS_ML+16}")
    g(f"ds_read_b128 {vr(vOKs,4)}, v{vZero} offset:{LDS_OK}")
    for wv in range(NW):
        g(f"ds_read_b64 {vr(vOw+2*wv,2)}, v{vOo} offset:{wv*2048}")
    g(f"s_mov_b32 s{sTmp}, 0xfffffffe")
    g("s_waitcnt lgkmcnt(4)")
    g(f"v_max_f32 v{vP+2}, v{vML}, v{vML+2}")
    g(f"v_and_b32 v{vOKs}, v{vOKs}, v{vOKs+1}")
    g(f"v_max3_f32 v{vP+2}, v{vP+2}, v{vML+4}, v{vML+6}")
    g(f"v_and_b32 v{vOKs+2}, v{vOKs+2}, v{vOKs+3}")
    for wv in range(NW):
        g(f"v_sub_f32 v{vML+2*wv}, v{vML+2*wv}, v{vP+2}")
    g(f"v_and_b32 v{vOKs}, v{vOKs}, v{vOKs+2}")
    for wv in range(NW):
        g(f"v_exp_f32 v{vML+2*wv}, v{vML+2*wv}")
    g(f"v_readfirstlane_b32 s{sOK}, v{vOKs}")
    g(f"v_mul_f32 v{vP+3}, v{vML}, v{vML+1}")
    for wv in range(1, NW):
        g(f"v_fmac_f32 v{vP+3}, v{vML+2*wv}, v{vML+2*wv+1}")
    g("s_waitcnt lgkmcnt(0)")
    g(f"v_mul_f32 v{vP}, v{vML}, v{vOw}")
    g(f"v_mul_f32 v{vP+1}, v{vML}, v{vOw+1}")
    for wv in range(1, NW):
        g(f"v_fmac_f32 v{vP}, v{vML+2*wv}, v{vOw+2*wv}")
        g(f"v_fmac_f32 v{vP+1}, v{vML+2*wv}, v{vOw+2*wv+1}")
    for r in (2, 3, 0, 1):
        g(f"v_min_u32 v{vP+r}, s{sTmp}, v{vP+r}")
    g(f"s_cmp_eq_u32 s{sOK}, 0")
    g("s_cbranch_scc1 L_slow")
    if emode == 0:
        g("s_waitcnt vmcnt(0)")
        round_check("L_final")
    publish()
    if emode == 3:
        g("s_waitcnt vmcnt(0)")
    elif emode == 4:
        round_loads()
        g("s_waitcnt vmcnt(6)")
        for k in (1, 2, 3):
            g(f"buffer_load_dwordx2 {vr(vKV+4*(k-1),2)}, v{vOo}, s[{sW}:{sW+3}], s{sSl+k} offen sc1")
            g(f"buffer_load_dwordx2 {vr(vKV+4*(k-1)+2,2)}, v{vMo}, s[{sW}:{sW+3}], s{sSl+k} offen offset:2048 sc1")
        g("s_waitcnt vmcnt(6)")
        round_check("L_final")
        g("s_waitcnt vmcnt(0)")
        for r in range(12):
            g(f"v_mov_b32 v{vR+r}, v{vKV+r}")
        round_check("L_final")
        g("s_branch L_fin")
    else:
        round_loads()
        g("s_waitcnt vmcnt(0)")
        round_check("L_final")
    g.lab("L_round2")
    g.c("own partial is visible now: if another one is still missing, its owner will see ours and finish the job")
    round_loads()
    g("s_waitcnt vmcnt(0)")
    round_check("L_final")
    g("s_branch L_fin")
    g.lab("L_slow")
    g.c("placement unknown or different XCCs: publish in both regions, then one returning atomic decides")
    publish()
    publish("sc1", R2)
    g("s_waitcnt vmcnt(0)")
    g("s_barrier")
    g(f"s_cmp_lg_u32 s{sWave}, 0")
    g("s_cbranch_scc1 L_noatom")
    g("s_mov_b64 exec, 1")
    g(f"v_mov_b32 v{vT0}, 0x1000000")
    g(f"s_lshl_b32 s{sTmp}, s{sGrp}, 2")
    g(f"buffer_atomic_add v{vT0}, v{vZero}, s[{sDv}:{sDv+3}], s{sTmp} offen sc0")
    g("s_waitcnt vmcnt(0)")
    g(f"ds_write_b32 v{vZero}, v{vT0} offset:{LDS_FLAG}")
    g("s_mov_b64 exec, -1")
    g("s_waitcnt lgkmcnt(0)")
    g.lab("L_noatom")
    g("s_barrier")
    g(f"ds_read_b32 v{vT0}, v{vZero} offset:{LDS_FLAG}")
    g("s_waitcnt lgkmcnt(0)")
    g(f"v_readfirstlane_b32 s{sChk}, v{vT0}")
    g("s_nop 3")
    g(f"s_and_b32 s{sTmp}, s{sChk}, 0xffffff")
    g(f"s_cmp_eq_u32 s{sTmp}, s{sExp}")
    g("s_cbranch_scc1 L_round2")
    g(f"s_lshr_b32 s{sTmp}, s{sChk}, 24")
    g(f"s_cmp_lg_u32 s{sTmp}, 3")
    g("s_cbranch_scc1 L_fin")
    round_loads(R2)
    g("s_waitcnt vmcnt(0)")
    g.lab("L_final")
    R = lambda k, r: (vP + r) if k == 0 else (vR + 4 * (k - 1) + r)
    g(f"v_max_f32 v{vMc}, v{R(0,2)}, v{R(1,2)}")
    g(f"v_max3_f32 v{vMc}, v{vMc}, v{R(2,2)}, v{R(3,2)}")
    for k in range(4):
        g(f"v_sub_f32 v{R(k,2)}, v{R(k,2)}, v{vMc}")
    for k in range(4):
        g(f"v_exp_f32 v{R(k,2)}, v{R(k,2)}")
    g("s_nop 0")
    for r in (3, 0, 1):
        for k in range(4):
            g(f"v_mul_f32 v{R(k,r)}, v{R(k,r)}, v{R(k,2)}")
    for r in (3, 0, 1):
        g(f"v_add_f32 v{R(0,r)}, v{R(0,r)}, v{R(1,r)}")
        g(f"v_add_f32 v{R(2,r)}, v{R(2,r)}, v{R(3,r)}")
    g(f"v_add_f32 v{R(0,3)}, v{R(0,3)}, v{R(2,3)}")
    g(f"v_rcp_f32 v{vL}, v{R(0,3)}")
    g(f"v_add_f32 v{R(0,0)}, v{R(0,0)}, v{R(2,0)}")
    g(f"v_add_f32 v{R(0,1)}, v{R(0,1)}, v{R(2,1)}")
    g(f"v_mul_f32 v{R(0,0)}, v{R(0,0)}, v{vL}")
    g(f"v_mul_f32 v{R(0,1)}, v{R(0,1)}, v{vL}")
    g(f"v_cvt_pk_bf16_f32 v{R(0,0)}, v{R(0,0)}, v{R(0,1)}")
    g(f"buffer_store_short v{R(0,0)}, v{vOutA}, s[{sOut}:{sOut+3}], 0 offen")
    g(f"buffer_store_short_d16_hi v{R(0,0)}, v{vOutA}, s[{sOut}:{sOut+3}], 0 offen offset:16")
    g.L.append("; WARM_END")
    g.lab("L_fin")
    if stamps:
        g(f"s_memrealtime s[{sT0+6}:{sT0+7}]")
        g(f"s_getreg_b32 s{sT0+8}, hwreg(HW_REG_XCC_ID)")
        g(f"s_mov_b32 s{sT0+9}, s{sOK}")
        g("s_waitcnt lgkmcnt(0)")
        g(f"s_mul_i32 s{sTmp}, s2, {NW}")
        g(f"s_add_u32 s{sTmp}, s{sTmp}, s{sWave}")
        g(f"s_lshl_b32 s{sTmp}, s{sTmp}, 6")
        g(f"s_add_u32 s{sTmp}, s{sTmp}, {STBASE}")
        g("s_mov_b64 exec, 1")
        for j in range(10):
            g(f"v_mov_b32 v{vKV+j}, s{sT0+j}")
        g(f"v_mov_b32 v{vKV+12}, 0")
        g(f"buffer_store_dwordx4 {vr(vKV,4)}, v{vKV+12}, s[{sW}:{sW+3}], s{sTmp} offen")
        g(f"buffer_store_dwordx4 {vr(vKV+4,4)}, v{vKV+12}, s[{sW}:{sW+3}], s{sTmp} offen offset:16")
        g(f"buffer_store_dwordx2 {vr(vKV+8,2)}, v{vKV+12}, s[{sW}:{sW+3}], s{sTmp} offen offset:32")
    g.lab("L_done")
    g("s_endpgm")
    g.lab("L_helper")
    g.c("helper wave: mark this workgroup's partial slot as empty, then count this workgroup (and its XCC) in")
    g("s_load_dwordx4 s[12:15], s[0:1], 32")
    g(f"s_getreg_b32 s{sExp}, hwreg(HW_REG_XCC_ID, 0, 4)")
    g(f"v_and_b32 v{vVoff}, 63, v0")
    g(f"v_lshlrev_b32 v{vVoff}, 4, v{vVoff}")
    for r in range(4):
        g(f"v_mov_b32 v{vS+r}, -1")
    g(f"s_cmp_gt_u32 s{sExp}, 7")
    g("s_cbranch_scc1 L_done")
    g(f"s_mul_i32 s{sExp}, s{sExp}, 3")
    g(f"s_lshl_b32 s{sExp}, 1, s{sExp}")
    g(f"s_lshl_b32 s{sTmp}, s{sGrp}, 2")
    g(f"s_lshl_b32 s{sSl}, s2, 12")
    g(f"s_mov_b32 s{sW+2}, {STBASE}")
    g(f"s_mov_b32 s{sW+3}, 0x20000")
    g("s_waitcnt lgkmcnt(0)")
    g(f"s_mov_b32 s{sW}, s14")
    g(f"s_mov_b32 s{sW+1}, s15")
    for wv in range(2):
        g(f"buffer_store_dwordx4 {vr(vS,4)}, v{vVoff}, s[{sW}:{sW+3}], s{sSl} offen offset:{wv*1024}")
    g("s_mov_b64 exec, 0xff")
    g(f"buffer_store_dwordx4 {vr(vS,4)}, v{vVoff}, s[{sW}:{sW+3}], s{sSl} offen offset:2048")
    g(f"s_add_u32 s{sDp}, s12, s{sTmp}")
    g(f"s_addc_u32 s{sDp+1}, s13, 0")
    g("s_waitcnt vmcnt(0)")
    g(f"s_atomic_add s{sExp}, s[{sDp}:{sDp+1}], 0x0")
    if warm:
        g.c("then walk the tail code (one branch per cache line, no lane active) so it is in the instruction cache")
        g("s_waitcnt lgkmcnt(0)")
        g("s_mov_b64 exec, -1")
        g(f"s_lshl_b32 s{sTmp}, s{sGrp}, 21")
        g(f"s_add_u32 s{sK}, s6, s{sTmp}")
        g(f"s_addc_u32 s{sK+1}, s7, 0")
        g(f"s_add_u32 s{sV}, s8, s{sTmp}")
        g(f"s_addc_u32 s{sV+1}, s9, 0")
        tail_setup(True)
        g("s_mov_b64 exec, 0")
        g("s_branch L_hop0")
    else:
        g("s_endpgm")
    g.lab("L_codeend")
    g.L.append('.section .rodata,"a"')
    g.L.append(".p2align 6")
    g.L.append(f".amdhsa_kernel {NAME}_kernel")
    g.L.append(f"  .amdhsa_next_free_vgpr {nv}")
    g.L.append(f"  .amdhsa_next_free_sgpr 92")
    g.L.append(f"  .amdhsa_accum_offset {(nv+3)//4*4}")
    g.L.append("  .amdhsa_group_segment_fixed_size 0")
    g.L.append("  .amdhsa_kernarg_size 48")
    g.L.append("  .amdhsa_user_sgpr_count 2")
    g.L.append("  .amdhsa_user_sgpr_kernarg_segment_ptr 1")
    g.L.append("  .amdhsa_system_sgpr_workgroup_id_x 1")
    g.L.append(".end_amdhsa_kernel")
    if warm:
        return add_hops(g.L, warm)
    return g.text()

def add_hops(L, spacing):
    import subprocess, re
    L = "\n".join(L).split("\n")
    def is_insn(l):
        t = l.strip()
        return bool(t) and not t.startswith(";") and not t.startswith(".") and not t.endswith(":")
    tmp = [l if "L_hop0" not in l else "    s_branch L_done" for l in L]
    open("hop.s", "w").write("\n".join(tmp) + "\n")
    subprocess.run(["clang", "-x", "assembler", "-target", "amdgcn-amd-amdhsa", "-mcpu=gfx950", "-c", "hop.s", "-o", "hop.o"], check=True)
    d = subprocess.run(["llvm-objdump", "-d", "--mcpu=gfx950", "hop.o"], capture_output=True, text=True).stdout
    sizes = [4 * len(m.group(1).split()) for m in re.finditer(r"// [0-9A-F]{12}: ([0-9A-F ]+)$", d, re.M)]
    out = []; k = 0; inside = False; since = None; nh = 0
    txt_end = [i for i, l in enumerate(L) if l.startswith(".section")][0]
    for i, l in enumerate(L):
        if l.startswith("; WARM_BEGIN"):
            inside = True; since = 1 << 30; continue
        if l.startswith("; WARM_END"):
            inside = False
            out.append(f"L_hop{nh}:"); out.append("    s_cbranch_execz L_done"); continue
        if i < txt_end and is_insn(l):
            sz = sizes[k]; k += 1
            if inside:
                if since + sz > spacing:
                    out.append(f"L_hop{nh}:"); out.append(f"    s_cbranch_execz L_hop{nh+1}"); nh += 1; since = 4
                since += sz
        out.append(l)
    assert k == len(sizes), (k, len(sizes))
    return "\n".join(out) + "\n"

if __name__ == "__main__":
    ap = argparse.ArgumentParser()
    ap.add_argument("-o", default="cdna_kernels/" + NAME + ".s")
    ap.add_argument("--a", type=int, default=5)
    ap.add_argument("--waits", default="4")
    ap.add_argument("--ld", default="nt")
    ap.add_argument("--stamps", action="store_true")
    ap.add_argument("--forcefb", action="store_true")
    ap.add_argument("--chkit", type=int, default=8)
    ap.add_argument("--tog", type=lambda x: int(x, 0), default=0xc000)
    ap.add_argument("--cpf", action="store_true")
    ap.add_argument("--warm", type=int, default=0)
    ap.add_argument("--flat", action="store_true")
    ap.add_argument("--noimm", action="store_true")
    ap.add_argument("--tau", type=int, default=0)
    ap.add_argument("--t00", type=int, default=70)
    ap.add_argument("--wlo", default="4")
    ap.add_argument("--whi", default="5")
    ap.add_argument("--org1", action="store_true")
    ap.add_argument("--selfcal", action="store_true")
    ap.add_argument("--dtau", type=int, default=0)
    ap.add_argument("--dl", type=int, default=0)
    ap.add_argument("--anchors", default="1,5,9")
    ap.add_argument("--fcap", type=int, default=14)
    ap.add_argument("--fixtau", action="store_true")
    ap.add_argument("--emode", type=int, default=0)
    ap.add_argument("--warmx", action="store_true")
    a = ap.parse_args()
    w = [int(x) for x in a.waits.split(",")]
    open(a.o, "w").write(gen(a.a, w, a.ld.replace("_", " ").replace("none", ""), a.stamps, a.forcefb, a.chkit, a.tog, a.cpf, a.warm, a.flat, a.noimm, a.tau, a.t00, [int(x) for x in a.wlo.split(",")], [int(x) for x in a.whi.split(",")], a.org1, a.selfcal, a.dtau, a.dl, tuple(int(x) for x in a.anchors.split(",")), a.fcap, a.fixtau, a.emode, a.warmx))
```

```python
import sys, math, argparse
from gen import HDR, NAME, G, vr, f2u

def gen(A=6, waits=(4, 4, 4, 5), ldflags="nt", stamps=False, forcefb=False, chkit=8, tog=0xc000, cpf=False, warm=0, flat=False, noimm=False, tau=0, t00=95, wlo=None, whi=None, org1=False, selfcal=False, dtau=0, dl=0, anchors=(1,5,9), fcap=14, fixtau=False, emode=0, warmx=False, lateclr=0):
    g = G()
    NW = 4; NSPLIT = 4; NG = 64
    NWG = NG * NSPLIT
    T = 32
    GB = 2 << 20
    NT = 256 if lateclr else 320
    LDS_ML = NW * 2048
    LDS_OK = LDS_ML + 4 * NW * 8
    LDS_FLAG = LDS_OK + 16
    LDS = LDS_FLAG + 16
    cscale = (128 ** -0.5) * math.log2(math.e)
    assert all(w <= A - 1 for w in waits) and A <= 12
    R2 = NWG * 4096
    STBASE = 2 * NWG * 4096

    vKoff = 1; vVoff = 2; vM = 3; vMc = 4; vL = 5; vMask0 = 6; vMask1 = 7
    vT0 = 8; vT1 = 9; vA = 10; vMcN = 11
    vQ = 12; vO = 16; vS = 24; vB = 40; vKV = 58
    vR = vS; vP = vS + 12
    e = vKV + 64
    vOo = e; vMo = e + 1; vOutA = e + 2; vLO = e + 3; vLM = e + 4; vLH = e + 5; vLK = e + 6; vZero = e + 7; vLane16 = e + 8; vWx = e + 9; vCl = e + 10
    nv = e + 14
    def slot(n): return vKV + (n % 16) * 4
    def X(i): return vB + 2 + 4 * i
    S = lambda i, r: vS + 4 * i + r

    sK = 16; sV = 20; sQ = 24; sW = 28; sOut = 32; sDv = 36
    sGrp = 40; sSplit = 41; sWave = 42; sKo = 43; sVo = 44; sC = 45; sIt = 46; sTmp = 47; sTmp2 = 48; sChk = 49
    sT0 = 50
    sDp = 60; sSl = 62; sOK = 67; sExp = 68; sCp = 4; sNow = 70; sTg = 72; sTau = 73; sLn = 74; sRep = 75; sMp = 76; sAcc = 77; sMx = 78; sPw = 79; sLv = 80; sTmp2x = 88

    g.L.append(HDR.rstrip())
    if stamps: g.L.append(f"; STAMPBASE {STBASE}")
    g.L.append(f"; @launch grid=({NWG},1,1) block=({NT},1,1) lds={LDS}")
    g.L.append("""; ---------------------------------------------------------------------------------------------
; ---------------------------------------------------------------------------------------------""")
    g.L.append('.amdgcn_target "amdgcn-amd-amdhsa--gfx950"')
    g.L.append(".text")
    g.L.append(f".globl {NAME}_kernel")
    g.L.append(".p2align 8")
    g.L.append(f".type {NAME}_kernel,@function")
    g.lab(f"{NAME}_kernel")
    if stamps:
        g(f"s_memrealtime s[{sT0}:{sT0+1}]")
    g(f"s_cmpk_ge_u32 s2, {NWG}")
    g("s_cbranch_scc1 L_done")
    g(f"s_load_dwordx2 s[{sK}:{sK+1}], s[0:1], 8")
    if tau and not org1: g(f"s_memrealtime s[{sNow}:{sNow+1}]")
    g(f"s_load_dwordx2 s[{sV}:{sV+1}], s[0:1], 16")
    g(f"s_load_dwordx2 s[{sQ}:{sQ+1}], s[0:1], 0")
    g.c("wg = 8*jj + x ; split = jj&3 ; group = x + 8*(jj>>2)  (a group's 4 workgroups usually share an XCD: speed only)")
    g.c("byte offset of the first tile: group*2MiB + (4*split + wave)*4KiB  (tile = 16 keys; wave part lives in the VGPR offset)")
    g(f"s_and_b32 s{sGrp}, s2, 7")
    g(f"s_lshr_b32 s{sTmp}, s2, 5")
    g(f"s_lshl3_add_u32 s{sGrp}, s{sTmp}, s{sGrp}")
    g(f"s_and_b32 s{sTmp}, s2, 24")
    g(f"s_lshl_b32 s{sKo}, s{sGrp}, 21")
    g(f"s_lshl_b32 s{sTmp}, s{sTmp}, 11")
    g(f"s_or_b32 s{sKo}, s{sKo}, s{sTmp}")
    g(f"s_brev_b32 s{sK+2}, 16                     ; 128 MiB")
    g(f"s_lshl_b32 s{sK+3}, 1, 17                  ; 0x20000")
    g.c("lane l = 16g + 4a + b.  K: key a, bytes 64g+16b of the row.  Q: head b, bytes 64g+16a.  V: linear")
    g(f"v_readfirstlane_b32 s{sWave}, v0")
    g(f"v_and_b32 v{vT0}, 3, v0")
    g(f"v_and_b32 v{vT1}, 0xcc, v0")
    g(f"v_and_b32 v{vA}, 48, v0")
    g(f"v_lshlrev_b32 v{vKoff}, 4, v{vT0}")
    g(f"v_lshl_or_b32 v{vKoff}, v{vT1}, 6, v{vKoff}")
    g(f"v_lshl_or_b32 v{vKoff}, v{vA}, 2, v{vKoff}")
    if not lateclr:
        g(f"s_cmpk_ge_u32 s{sWave}, 256")
        g("s_cbranch_scc1 L_helper")
    stride = 16 * 4096
    def issue(n):
        p = n % 8
        so, vo, srd = (sKo, vKoff, sK) if p < 4 else (sVo, vVoff, sV)
        g(f"buffer_load_dwordx4 {vr(slot(n),4)}, v{vo}, s[{srd}:{srd+3}], s{so} offen {ldflags}")
        if p % 4 == 3:
            g(f"s_add_u32 s{so}, s{so}, {stride-3072}")
            if tog: g(f"s_xor_b32 s{so}, s{so}, {tog:#x}")
        else:
            g(f"s_addk_i32 s{so}, 1024")
    g("s_waitcnt lgkmcnt(0)")
    g(f"buffer_load_dwordx4 {vr(slot(0),4)}, v{vKoff}, s[{sK}:{sK+3}], s{sKo} offen {ldflags}")
    g(f"s_mov_b32 s{sVo}, s{sKo}")
    g(f"s_addk_i32 s{sKo}, 1024")
    g(f"s_lshr_b32 s{sWave}, s{sWave}, 6")
    g(f"v_bfe_u32 v{vT1}, v0, 2, 2")
    g(f"v_lshlrev_b32 v{vMcN}, 8, v{vT0}")
    g(f"v_lshl_or_b32 v{vMcN}, v{vT1}, 4, v{vMcN}")
    g(f"v_lshl_or_b32 v{vMcN}, v{vA}, 2, v{vMcN}")
    g(f"s_lshl_b32 s{sTmp2}, s{sGrp}, 10")
    g(f"s_mov_b32 s{sQ+2}, 0x10000")
    g(f"s_mov_b32 s{sQ+3}, s{sK+3}")
    g(f"buffer_load_dwordx4 {vr(vQ,4)}, v{vMcN}, s[{sQ}:{sQ+3}], s{sTmp2} offen")
    g(f"v_and_b32 v{vLane16}, 63, v0")
    issue(1)
    g(f"v_and_b32 v{vVoff}, 0xc0, v0")
    issue(2)
    g(f"v_lshlrev_b32 v{vLane16}, 4, v{vLane16}       ; lane*16")
    issue(3)
    g(f"v_lshl_or_b32 v{vVoff}, v{vVoff}, 6, v{vLane16}")
    g(f"s_mov_b32 s{sV+2}, s{sK+2}")
    g(f"s_mov_b32 s{sV+3}, s{sK+3}")
    for n in range(4, A):
        issue(n)
    g("s_load_dwordx2 s[10:11], s[0:1], 24          ; out")
    g("s_load_dwordx4 s[12:15], s[0:1], 32")
    if cpf:
        g.c("pull this kernel's own code into L2 early")
        g(f"s_getpc_b64 s[{sCp}:{sCp+1}]")
        g.lab("L_pc")
        g(f"s_sub_u32 s{sCp}, s{sCp}, L_pc-{NAME}_kernel")
        g(f"s_subb_u32 s{sCp+1}, s{sCp+1}, 0")
        g(f"s_mov_b32 s{sCp+2}, L_codeend-{NAME}_kernel")
        g(f"s_mov_b32 s{sCp+3}, 0x20000")
        g(f"v_lshlrev_b32 v{vM}, 4, v0")
        g(f"buffer_load_dwordx4 {vr(slot(12),4)}, v{vM}, s[{sCp}:{sCp+3}], 0 offen")
    g(f"s_mov_b32 s{sC}, {f2u(cscale):#x}           ; D^-0.5 * log2(e)")
    g(f"v_mov_b32 v{vM}, 0xff800000")
    g(f"v_mov_b32 v{vMc}, v{vM}")
    g(f"v_mov_b32 v{vL}, 0")
    for r in range(8):
        g(f"v_mov_b32 v{vO+r}, 0")
    for r in range(18):
        g(f"v_mov_b32 v{vB+r}, 0")
    for r in range(8):
        g(f"v_mov_b32 v{slot(14)+r}, 0")
    g.c("P placement masks: column group a selects bf16 slot a of the B fragment")
    g(f"v_and_b32 v{vT0}, 1, v{vT1}")
    g(f"v_lshlrev_b32 v{vT0}, 4, v{vT0}")
    g(f"v_mov_b32 v{vA}, 0xffff")
    g(f"v_lshlrev_b32 v{vA}, v{vT0}, v{vA}")
    g(f"v_cmp_gt_u32 vcc, 2, v{vT1}")
    g(f"s_mov_b32 s{sIt}, {T//2}")
    g(f"s_mov_b32 s{sChk}, 0")
    g(f"v_cndmask_b32 v{vMask0}, 0, v{vA}, vcc")
    g(f"v_cndmask_b32 v{vMask1}, v{vA}, 0, vcc")
    if stamps:
        g(f"s_waitcnt vmcnt({A-1})")
        g(f"s_memrealtime s[{sT0+2}:{sT0+3}]")
    def QK(m):
        i = m % 8
        g(f"v_mfma_f32_16x16x32_bf16 {vr(S(i,0),4)}, {vr(slot(m),4)}, {vr(vQ,4)}, 0")
    def PV(mv):
        i = mv % 8 - 4
        g(f"v_mfma_f32_16x16x32_bf16 {vr(vO,4)}, {vr(slot(mv),4)}, {vr(X(i),4)}, {vr(vO,4)}")
        g(f"v_mfma_f32_16x16x32_bf16 {vr(vO+4,4)}, {vr(slot(mv),4)}, {vr(X(i)-2,4)}, {vr(vO+4,4)}")
    def SMA(nop=3):
        g(f"s_nop {nop}")
        for i in range(4):
            g(f"v_add_f32_dpp v{S(i,1)}, v{S(i,2)}, v{S(i,0)} row_ror:8 row_mask:0xf bank_mask:0x1")
        for i in range(4):
            g(f"v_add_f32_dpp v{S(i,1)}, v{S(i,0)}, v{S(i,2)} row_ror:8 row_mask:0xf bank_mask:0x4")
        for i in range(4):
            g(f"v_add_f32_dpp v{S(i,1)}, v{S(i,1)}, v{S(i,3)} row_ror:8 row_mask:0xf bank_mask:0x8")
        for i in range(4):
            g(f"v_add_f32_dpp v{S(i,1)}, v{S(i,3)}, v{S(i,1)} row_ror:8 row_mask:0xf bank_mask:0x2")
        for i in range(4):
            g(f"v_add_f32_dpp v{S(i,0)}, v{S(i,1)}, v{S(i,1)} row_ror:4 row_mask:0xf bank_mask:0xf")
    def SMB():
        g(f"v_max3_f32 v{vT0}, v{S(0,0)}, v{S(1,0)}, v{S(2,0)}")
        g(f"v_max3_f32 v{vT0}, v{vT0}, v{S(3,0)}, v{vM}")
        g(f"v_mov_b32 v{vT1}, v{vT0}")
        g("s_nop 1")
        g(f"v_permlane32_swap_b32 v{vT0}, v{vT1}")
        g("s_nop 1")
        g(f"v_max_f32 v{vT0}, v{vT0}, v{vT1}")
        g(f"v_mov_b32 v{vT1}, v{vT0}")
        g("s_nop 1")
        g(f"v_permlane16_swap_b32 v{vT0}, v{vT1}")
        g("s_nop 1")
        g(f"v_max_f32 v{vM}, v{vT0}, v{vT1}")
        g(f"v_mul_f32 v{vMcN}, s{sC}, v{vM}")
        g(f"v_sub_f32 v{vA}, v{vMc}, v{vMcN}")
        g(f"v_exp_f32 v{vA}, v{vA}")
        for i in range(4):
            g(f"v_fma_f32 v{S(i,0)}, v{S(i,0)}, s{sC}, -v{vMcN}")
        for i in range(4):
            g(f"v_exp_f32 v{S(i,0)}, v{S(i,0)}")
        g(f"v_mov_b32 v{vMc}, v{vMcN}")
    def SMC():
        for r in range(8):
            g(f"v_mul_f32 v{vO+r}, v{vO+r}, v{vA}")
        for i in range(4):
            g(f"v_cvt_pk_bf16_f32 v{S(i,1)}, v{S(i,0)}, v{S(i,0)}")
        for i in range(4):
            g(f"v_and_b32 v{X(i)}, v{S(i,1)}, v{vMask0}")
            g(f"v_and_b32 v{X(i)+1}, v{S(i,1)}, v{vMask1}")
        g(f"v_fma_f32 v{vL}, v{vL}, v{vA}, v{S(0,0)}")
        g(f"v_add_f32 v{S(1,0)}, v{S(1,0)}, v{S(2,0)}")
        g(f"v_add_f32 v{vL}, v{vL}, v{S(3,0)}")
        g(f"v_add_f32 v{vL}, v{vL}, v{S(1,0)}")
    def compute(m):
        p = m % 8
        if p < 4: QK(m)
        if p in (0, 1): PV(m - 2 + 16)
        if p == 4: SMA()
        if p == 5: SMB()
        if p == 6: SMC(); PV(m - 2)
        if p == 7: PV(m - 2)
    if not tau:
        g.lab("L_loop")
        for m in range(16):
            g(f"s_waitcnt vmcnt({waits[m % len(waits)]})")
            issue(m + A)
            compute(m)
        g(f"s_sub_u32 s{sIt}, s{sIt}, 1")
        g(f"s_cmp_lg_u32 s{sIt}, 1")
        g("s_cbranch_scc1 L_loop")
    elif lateclr:
        g("s_waitcnt lgkmcnt(0)")
        g(f"s_add_u32 s{sTg}, s{sNow}, {t00 & 0xffffffff}")
        g(f"s_mov_b32 s{sW}, s14")
        g(f"s_mov_b32 s{sW+1}, s15")
        g(f"s_mov_b32 s{sW+2}, {STBASE + (NWG*NW*64 if stamps else 0)}")
        g(f"s_mov_b32 s{sW+3}, 0x20000")
        g(f"s_lshl_b32 s{sSl}, s2, 12")
        g(f"s_cmp_eq_u32 s{sWave}, 0")
        g(f"s_cselect_b32 s{sRep}, {lateclr}, -16")
        def body(name, ws_):
            g.lab(name)
            for m in range(16):
                if m == 14:
                    g(f"s_memrealtime s[{sNow}:{sNow+1}]")
                g(f"s_waitcnt vmcnt({ws_[m % len(ws_)]})")
                issue(m + A)
                compute(m)
        body("L_loop", wlo)
        g("s_branch L_ctl")
        body("L_loopB", whi)
        g.lab("L_ctl")
        g(f"s_sub_u32 s{sIt}, s{sIt}, 1")
        g(f"s_sub_u32 s{sTmp2x}, s{sRep}, s{sIt}")
        g(f"s_cmp_le_u32 s{sTmp2x}, 1")
        g("s_cbranch_scc1 L_house")
        g.lab("L_ctl2")
        g(f"s_cmp_eq_u32 s{sIt}, 1")
        g("s_cbranch_scc1 L_last")
        g(f"s_add_u32 s{sTg}, s{sTg}, {tau}")
        g("s_waitcnt lgkmcnt(0)")
        g(f"s_sub_u32 s{sTmp2x}, s{sNow}, s{sTg}")
        g(f"s_cmp_gt_i32 s{sTmp2x}, 0")
        g("s_cbranch_scc1 L_loopB")
        g("s_branch L_loop")
        g.lab("L_house")
        g(f"s_cmp_eq_u32 s{sTmp2x}, 1")
        g("s_cbranch_scc1 L_house2")
        g.c("mark this workgroup's partial slot as empty")
        for r in range(4):
            g(f"v_mov_b32 v{vCl+r}, -1")
        for wv in range(2):
            g(f"buffer_store_dwordx4 {vr(vCl,4)}, v{vLane16}, s[{sW}:{sW+3}], s{sSl} offen offset:{wv*1024}")
        g("s_mov_b64 exec, 0xff")
        g(f"buffer_store_dwordx4 {vr(vCl,4)}, v{vLane16}, s[{sW}:{sW+3}], s{sSl} offen offset:2048")
        g("s_mov_b64 exec, -1")
        g("s_branch L_ctl2")
        g.lab("L_house2")
        g.c("one iteration later those stores have retired (older than loads already waited for): count this workgroup and its XCC in")
        g("s_waitcnt lgkmcnt(0)")
        g(f"s_getreg_b32 s{sMp}, hwreg(HW_REG_XCC_ID, 0, 4)")
        g(f"s_cmp_gt_u32 s{sMp}, 7")
        g("s_cbranch_scc1 L_ctl2")
        g(f"s_mul_i32 s{sMp}, s{sMp}, 3")
        g(f"s_lshl_b32 s{sMp}, 1, s{sMp}")
        g(f"s_lshl_b32 s{sAcc}, s{sGrp}, 2")
        g(f"s_sub_u32 s{sTmp2x}, s{sNow}, s{sTg}")
        g(f"s_atomic_add s{sMp}, s[12:13], s{sAcc}")
        g.c("(skip the lgkmcnt wait of the normal path so the atomic is not waited for)")
        g(f"s_cmp_eq_u32 s{sIt}, 1")
        g("s_cbranch_scc1 L_last")
        g(f"s_add_u32 s{sTg}, s{sTg}, {tau}")
        g(f"s_sub_u32 s{sTmp2x}, s{sNow}, s{sTg}")
        g(f"s_cmp_gt_i32 s{sTmp2x}, 0")
        g("s_cbranch_scc1 L_loopB")
        g("s_branch L_loop")
        g.lab("L_last")
    elif not selfcal:
        if org1:
            g(f"s_waitcnt vmcnt({A-1})")
            g(f"s_memrealtime s[{sNow}:{sNow+1}]")
        g("s_waitcnt lgkmcnt(0)")
        g(f"s_add_u32 s{sTg}, s{sNow}, {t00 & 0xffffffff}")
        def body(name, ws_):
            g.lab(name)
            for m in range(16):
                if m == 14:
                    g(f"s_memrealtime s[{sNow}:{sNow+1}]")
                g(f"s_waitcnt vmcnt({ws_[m % len(ws_)]})")
                issue(m + A)
                compute(m)
            g(f"s_sub_u32 s{sIt}, s{sIt}, 1")
            g(f"s_cmp_eq_u32 s{sIt}, 1")
            g("s_cbranch_scc1 L_last")
            g(f"s_add_u32 s{sTg}, s{sTg}, {tau}")
            g("s_waitcnt lgkmcnt(0)")
            g(f"s_sub_u32 s{sTmp}, s{sNow}, s{sTg}")
            g(f"s_cmp_gt_i32 s{sTmp}, 0")
        body("L_loop", wlo)
        g("s_cbranch_scc0 L_loop")
        body("L_loopB", whi)
        g("s_cbranch_scc1 L_loopB")
        g("s_branch L_loop")
        g.lab("L_last")
    else:
        PACE = 3 << 20
        g("s_waitcnt lgkmcnt(0)")
        g(f"s_add_u32 s{sTg}, s{sNow}, {t00 & 0xffffffff}")
        g(f"s_movk_i32 s{sTau}, {tau}")
        g(f"s_mov_b32 s{sLn}, {PACE - 128}")
        g(f"s_lshl_b32 s{sPw}, s2, 2")
        g(f"s_add_u32 s{sPw}, s{sPw}, {PACE}")
        g(f"s_or_b32 s{sRep}, s{sWave}, s2")
        g(f"s_lshr_b32 s{sTmp}, s2, 3")
        g(f"s_or_b32 s{sRep}, s{sWave}, s{sTmp}")
        g(f"s_mov_b32 s{sMp}, 0")
        def body(name, ws_):
            g.lab(name)
            for m in range(16):
                if m == 14:
                    g(f"s_memrealtime s[{sNow}:{sNow+1}]")
                    g(f"s_load_dwordx8 s[{sLv}:{sLv+7}], s[14:15], s{sLn}")
                g(f"s_waitcnt vmcnt({ws_[m % len(ws_)]})")
                issue(m + A)
                compute(m)
        body("L_loop", wlo)
        g("s_branch L_ctl")
        body("L_loopB", whi)
        g.lab("L_ctl")
        g(f"s_sub_u32 s{sIt}, s{sIt}, 1")
        g(f"s_cmp_eq_u32 s{sIt}, 1")
        g("s_cbranch_scc1 L_last")
        g(f"s_add_u32 s{sTg}, s{sTg}, s{sTau}")
        g(f"s_addk_i32 s{sLn}, 128")
        g("s_waitcnt lgkmcnt(0)")
        g(f"s_cmp_lg_u32 s{sRep}, 0")
        g("s_cbranch_scc1 L_nopub")
        g(f"s_mov_b32 s{sTmp}, s{sNow}")
        g(f"s_atomic_swap s{sTmp}, s[14:15], s{sPw}")
        g(f"s_addk_i32 s{sPw}, 128")
        g.lab("L_nopub")
        a0 = anchors[0]; step = anchors[1] - anchors[0]
        assert all(anchors[i+1]-anchors[i] == step for i in range(len(anchors)-1)) and step in (2, 4)
        g(f"s_and_b32 s{sTmp2x}, s{sIt}, {step-1}")
        g(f"s_cmp_lg_u32 s{sTmp2x}, {(14 - a0) % step}")
        g("s_cbranch_scc1 L_dec")
        g(f"s_cmp_lt_u32 s{sIt}, {14 - (a0 if fixtau else anchors[-1])}")
        g("s_cbranch_scc1 L_dec")
        g(f"s_cmp_gt_u32 s{sIt}, {14 - a0}")
        g("s_cbranch_scc1 L_dec")
        g(f"s_mov_b32 s{sAcc}, 0")
        g(f"s_mov_b32 s{sMx}, 0")
        for k in range(8):
            g(f"s_sub_u32 s{sLv+k}, s{sNow}, s{sLv+k}")
            g(f"s_add_u32 s{sAcc}, s{sAcc}, s{sLv+k}")
            g(f"s_max_u32 s{sMx}, s{sMx}, s{sLv+k}")
        g(f"s_cmpk_gt_u32 s{sMx}, 1000")
        g("s_cbranch_scc1 L_bad")
        g(f"s_lshr_b32 s{sAcc}, s{sAcc}, 3")
        g(f"s_sub_u32 s{sAcc}, s{sNow}, s{sAcc}")
        g(f"s_cmp_eq_u32 s{sMp}, 0")
        g("s_cbranch_scc1 L_notau")
        g(f"s_sub_u32 s{sTau}, s{sAcc}, s{sMp}")
        g(f"s_lshr_b32 s{sTau}, s{sTau}, {1 if step == 2 else 2}")
        if dtau: g(f"s_addk_i32 s{sTau}, {dtau}")
        g.lab("L_notau")
        g(f"s_mov_b32 s{sMp}, s{sAcc}")
        g(f"s_add_u32 s{sTg}, s{sAcc}, s{sTau}")
        if dl: g(f"s_addk_i32 s{sTg}, {dl}")
        g("s_branch L_dec")
        g.lab("L_bad")
        g(f"s_mov_b32 s{sMp}, 0")
        g.lab("L_dec")
        g(f"s_sub_u32 s{sTmp2x}, s{sNow}, s{sTg}")
        g(f"s_cmp_gt_i32 s{sTmp2x}, 0")
        g("s_cbranch_scc1 L_loopB")
        g("s_branch L_loop")
        g.lab("L_last")
    g.c("last two tiles: slightly deeper window, no loads past the end")
    issued = A
    for n in range(A, fcap):
        issue(n); issued = n + 1
    def tail_setup(helper=False):
        g.c("everything the tail needs (all loads are in flight meanwhile)")
        g("s_waitcnt lgkmcnt(0)")
        g(f"s_lshl_b32 s{sTmp}, s{sGrp}, 2")
        g(f"s_add_u32 s{sDp}, s12, s{sTmp}")
        g(f"s_addc_u32 s{sDp+1}, s13, 0")
        if chkit == 8 and not helper:
            g(f"s_load_dword s{sChk}, s[{sDp}:{sDp+1}], 0x0")
        g(f"s_mov_b32 s{sW}, s14")
        g(f"s_mov_b32 s{sW+1}, s15")
        g(f"s_mov_b32 s{sW+2}, {STBASE + (NWG*NW*64 if stamps else 0)}")
        g(f"s_mov_b32 s{sW+3}, 0x20000")
        g(f"s_add_u32 s{sOut}, s10, s{sTmp2}")
        g(f"s_addc_u32 s{sOut+1}, s11, 0")
        g(f"s_movk_i32 s{sOut+2}, 1024")
        g(f"s_mov_b32 s{sOut+3}, 0x20000")
        g(f"s_mov_b32 s{sDv}, s12")
        g(f"s_mov_b32 s{sDv+1}, s13")
        g(f"s_movk_i32 s{sDv+2}, 256")
        g(f"s_mov_b32 s{sDv+3}, 0x20000")
        g(f"s_lshl_b32 s{sSl}, s2, 12")
        for k in (1, 2, 3):
            g(f"s_xor_b32 s{sSl+k}, s{sSl}, {k*8*4096}")
        g.c("counter word expected when all four workgroups checked in from THIS XCC: 4 << (3*xcc); ids > 7 never match")
        g(f"s_getreg_b32 s{sExp}, hwreg(HW_REG_XCC_ID, 0, 4)")
        g(f"s_mul_i32 s{sTmp}, s{sExp}, 3")
        g(f"s_lshl_b32 s{sTmp}, 4, s{sTmp}")
        g(f"s_cmp_gt_u32 s{sExp}, 7")
        g(f"s_cselect_b32 s{sExp}, -1, s{sTmp}")
        if forcefb:
            g(f"s_mov_b32 s{sExp}, -1")
        g(f"v_lshlrev_b32 v{vOo}, 3, v0")
        g(f"v_bfe_u32 v{vLH}, v0, 1, 2")
        g(f"s_lshl_b32 s{sTmp}, s{sWave}, 5")
        g(f"v_lshl_add_u32 v{vMo}, v{vLH}, 3, s{sTmp}")
        g(f"v_lshlrev_b32 v{vOutA}, 8, v{vLH}")
        g(f"v_lshlrev_b32 v{vLH}, 5, v{vLH}")
        g(f"v_bfe_u32 v{vZero}, v0, 5, 2")
        g(f"v_lshl_add_u32 v{vOutA}, v{vZero}, 6, v{vOutA}")
        g(f"v_and_b32 v{vZero}, 1, v0")
        g(f"v_lshl_add_u32 v{vOutA}, v{vZero}, 5, v{vOutA}")
        g(f"v_bfe_u32 v{vZero}, v0, 7, 1")
        g(f"v_lshl_add_u32 v{vOutA}, v{vZero}, 3, v{vOutA}")
        g(f"v_bfe_u32 v{vZero}, v0, 3, 2")
        g(f"v_lshl_add_u32 v{vOutA}, v{vZero}, 1, v{vOutA}")
        g(f"v_mov_b32 v{vZero}, 0")
        g(f"s_lshl_b32 s{sTmp}, s{sWave}, 11")
        g(f"v_add_u32 v{vLO}, s{sTmp}, v{vLane16}")
        g(f"s_lshl_b32 s{sTmp}, s{sWave}, 3")
        g(f"v_lshl_add_u32 v{vLM}, v{vLane16}, 1, s{sTmp}")
        g(f"s_lshl_b32 s{sTmp}, s{sWave}, 2")
        g(f"v_mov_b32 v{vLK}, s{sTmp}")

    tail_setup()
    g.L.append("; WARM_BEGIN")
    st = {"issued": issued}
    xpos = None
    if warmx:
        g.c("touch the group's four partial slots (wave w -> slot split^w) so they are in L2 when the hand-off starts")
        g(f"s_lshl_b32 s{sTmp}, s{sWave}, 15")
        g(f"s_xor_b32 s{sTmp}, s{sTmp}, s{sSl}")
        g(f"v_lshlrev_b32 v{vT0}, 2, v{vLane16}")
        g(f"v_min_u32 v{vT0}, 0x840, v{vT0}")
        g(f"buffer_load_dword v{vWx}, v{vT0}, s[{sW}:{sW+3}], s{sTmp} offen sc1")
        xpos = issued
    def w(m):
        g(f"s_waitcnt vmcnt({st['issued'] - 1 - m + (1 if xpos is not None and m < xpos else 0)})")
        n = m + fcap
        if fcap < 14 and n <= 15 and n >= st["issued"]:
            issue(n); st["issued"] = n + 1
    for m in (0, 1):
        w(m); QK(m); PV(m + 14)
        if fcap >= 14:
            issue(14 + m); st["issued"] = 15 + m
    for m in (2, 3):
        w(m); QK(m)
    SMA(4); SMB(); SMC()
    for m in (4, 5, 6, 7):
        w(m); PV(m)
    for m in (8, 9, 10, 11):
        w(m); QK(m)
    SMA(4); SMB(); SMC()
    g.c("row sums across the four key groups; publish (max, sum) and this wave's view of the counter to LDS")
    g(f"v_mov_b32 v{vT1}, v{vL}")
    g("s_waitcnt lgkmcnt(0)")
    g(f"s_and_b32 s{sChk}, s{sChk}, 0xffffff")
    g(f"v_permlane32_swap_b32 v{vL}, v{vT1}")
    g(f"s_cmp_eq_u32 s{sChk}, s{sExp}")
    g(f"s_cselect_b32 s{sOK}, 1, 0")
    g(f"v_add_f32 v{vL}, v{vL}, v{vT1}")
    g(f"v_mov_b32 v{vT1}, v{vL}")
    g(f"v_mov_b32 v{vM}, s{sOK}")
    g("s_nop 0")
    g(f"v_permlane16_swap_b32 v{vL}, v{vT1}")
    g("s_nop 1")
    g(f"v_add_f32 v{vL}, v{vL}, v{vT1}")
    g("s_mov_b64 exec, 0xf")
    g(f"ds_write_b64 v{vLM}, {vr(vMc,2)} offset:{LDS_ML}")
    g(f"ds_write_b32 v{vLK}, v{vM} offset:{LDS_OK}")
    g("s_mov_b64 exec, -1")
    g("s_nop 3")
    for m in (12, 13, 14, 15):
        w(m); PV(m)
    if stamps:
        g(f"s_memrealtime s[{sT0+4}:{sT0+5}]")
    def round_loads(extra=0):
        for k in (1, 2, 3):
            so = f"s{sSl+k}"
            if extra:
                g(f"s_add_u32 s{sTmp}, s{sSl+k}, {extra}"); so = f"s{sTmp}"
            g(f"buffer_load_dwordx2 {vr(vR+4*(k-1),2)}, v{vOo}, s[{sW}:{sW+3}], {so} offen sc1")
            g(f"buffer_load_dwordx2 {vr(vR+4*(k-1)+2,2)}, v{vMo}, s[{sW}:{sW+3}], {so} offen offset:2048 sc1")
    def publish(flags="", extra=0):
        so = f"s{sSl}"
        if extra:
            g(f"s_add_u32 s{sTmp}, s{sSl}, {extra}"); so = f"s{sTmp}"
        g(f"buffer_store_dwordx2 {vr(vP,2)}, v{vOo}, s[{sW}:{sW+3}], {so} offen {flags}")
        g("s_mov_b64 exec, 0x55")
        g(f"buffer_store_dwordx2 {vr(vP+2,2)}, v{vMo}, s[{sW}:{sW+3}], {so} offen offset:2048 {flags}")
        g("s_mov_b64 exec, -1")
    def round_check(target_ok):
        g(f"v_max3_u32 v{vT0}, v{vR}, v{vR+1}, v{vR+2}")
        g(f"v_max3_u32 v{vT1}, v{vR+3}, v{vR+4}, v{vR+5}")
        g(f"v_max3_u32 v{vT0}, v{vT0}, v{vR+6}, v{vR+7}")
        g(f"v_max3_u32 v{vT1}, v{vT1}, v{vR+8}, v{vR+9}")
        g(f"v_max3_u32 v{vT0}, v{vT0}, v{vR+10}, v{vR+11}")
        g(f"v_max_u32 v{vT0}, v{vT0}, v{vT1}")
        g(f"v_cmp_eq_u32 vcc, -1, v{vT0}")
        g(f"s_cbranch_vccz {target_ok}")
    if emode < 2:
        g(f"s_cmp_eq_u32 s{sOK}, 0")
        g("s_cbranch_scc1 L_noearly")
        g.c("early look at the other three partials (valid: all four slots were marked empty before)")
        round_loads()
        g("s_branch L_wr")
        g.lab("L_noearly")
        g("s_nop 7")
        g.lab("L_wr")
    else:
        g("s_nop 7")
    g(f"ds_write_b128 v{vLO}, {vr(vO,4)}")
    g(f"ds_write_b128 v{vLO}, {vr(vO+4,4)} offset:1024")
    vML = vB; vOw = vB + 8; vOKs = vQ
    g("s_waitcnt lgkmcnt(0)")
    g("s_barrier")
    g(f"ds_read_b128 {vr(vML,4)}, v{vLH} offset:{LDS_ML}")
    g(f"ds_read_b128 {vr(vML+4,4)}, v{vLH} offset:{LDS_ML+16}")
    g(f"ds_read_b128 {vr(vOKs,4)}, v{vZero} offset:{LDS_OK}")
    for wv in range(NW):
        g(f"ds_read_b64 {vr(vOw+2*wv,2)}, v{vOo} offset:{wv*2048}")
    g(f"s_mov_b32 s{sTmp}, 0xfffffffe")
    g("s_waitcnt lgkmcnt(4)")
    g(f"v_max_f32 v{vP+2}, v{vML}, v{vML+2}")
    g(f"v_and_b32 v{vOKs}, v{vOKs}, v{vOKs+1}")
    g(f"v_max3_f32 v{vP+2}, v{vP+2}, v{vML+4}, v{vML+6}")
    g(f"v_and_b32 v{vOKs+2}, v{vOKs+2}, v{vOKs+3}")
    for wv in range(NW):
        g(f"v_sub_f32 v{vML+2*wv}, v{vML+2*wv}, v{vP+2}")
    g(f"v_and_b32 v{vOKs}, v{vOKs}, v{vOKs+2}")
    for wv in range(NW):
        g(f"v_exp_f32 v{vML+2*wv}, v{vML+2*wv}")
    g(f"v_readfirstlane_b32 s{sOK}, v{vOKs}")
    g(f"v_mul_f32 v{vP+3}, v{vML}, v{vML+1}")
    for wv in range(1, NW):
        g(f"v_fmac_f32 v{vP+3}, v{vML+2*wv}, v{vML+2*wv+1}")
    g("s_waitcnt lgkmcnt(0)")
    g(f"v_mul_f32 v{vP}, v{vML}, v{vOw}")
    g(f"v_mul_f32 v{vP+1}, v{vML}, v{vOw+1}")
    for wv in range(1, NW):
        g(f"v_fmac_f32 v{vP}, v{vML+2*wv}, v{vOw+2*wv}")
        g(f"v_fmac_f32 v{vP+1}, v{vML+2*wv}, v{vOw+2*wv+1}")
    for r in (2, 3, 0, 1):
        g(f"v_min_u32 v{vP+r}, s{sTmp}, v{vP+r}")
    g(f"s_cmp_eq_u32 s{sOK}, 0")
    g("s_cbranch_scc1 L_slow")
    if emode == 0:
        g("s_waitcnt vmcnt(0)")
        round_check("L_final")
    publish()
    if emode == 3:
        g("s_waitcnt vmcnt(0)")
    elif emode == 4:
        round_loads()
        g("s_waitcnt vmcnt(6)")
        for k in (1, 2, 3):
            g(f"buffer_load_dwordx2 {vr(vKV+4*(k-1),2)}, v{vOo}, s[{sW}:{sW+3}], s{sSl+k} offen sc1")
            g(f"buffer_load_dwordx2 {vr(vKV+4*(k-1)+2,2)}, v{vMo}, s[{sW}:{sW+3}], s{sSl+k} offen offset:2048 sc1")
        g("s_waitcnt vmcnt(6)")
        round_check("L_final")
        g("s_waitcnt vmcnt(0)")
        for r in range(12):
            g(f"v_mov_b32 v{vR+r}, v{vKV+r}")
        round_check("L_final")
        g("s_branch L_fin")
    else:
        round_loads()
        g("s_waitcnt vmcnt(0)")
        round_check("L_final")
    g.lab("L_round2")
    g.c("own partial is visible now: if another one is still missing, its owner will see ours and finish the job")
    round_loads()
    g("s_waitcnt vmcnt(0)")
    round_check("L_final")
    g("s_branch L_fin")
    g.lab("L_slow")
    g.c("placement unknown or different XCCs: publish in both regions, then one returning atomic decides")
    publish()
    publish("sc1", R2)
    g("s_waitcnt vmcnt(0)")
    g("s_barrier")
    g(f"s_cmp_lg_u32 s{sWave}, 0")
    g("s_cbranch_scc1 L_noatom")
    g("s_mov_b64 exec, 1")
    g(f"v_mov_b32 v{vT0}, 0x1000000")
    g(f"s_lshl_b32 s{sTmp}, s{sGrp}, 2")
    g(f"buffer_atomic_add v{vT0}, v{vZero}, s[{sDv}:{sDv+3}], s{sTmp} offen sc0")
    g("s_waitcnt vmcnt(0)")
    g(f"ds_write_b32 v{vZero}, v{vT0} offset:{LDS_FLAG}")
    g("s_mov_b64 exec, -1")
    g("s_waitcnt lgkmcnt(0)")
    g.lab("L_noatom")
    g("s_barrier")
    g(f"ds_read_b32 v{vT0}, v{vZero} offset:{LDS_FLAG}")
    g("s_waitcnt lgkmcnt(0)")
    g(f"v_readfirstlane_b32 s{sChk}, v{vT0}")
    g("s_nop 3")
    g(f"s_and_b32 s{sTmp}, s{sChk}, 0xffffff")
    g(f"s_cmp_eq_u32 s{sTmp}, s{sExp}")
    g("s_cbranch_scc1 L_round2")
    g(f"s_lshr_b32 s{sTmp}, s{sChk}, 24")
    g(f"s_cmp_lg_u32 s{sTmp}, 3")
    g("s_cbranch_scc1 L_fin")
    round_loads(R2)
    g("s_waitcnt vmcnt(0)")
    g.lab("L_final")
    R = lambda k, r: (vP + r) if k == 0 else (vR + 4 * (k - 1) + r)
    g(f"v_max_f32 v{vMc}, v{R(0,2)}, v{R(1,2)}")
    g(f"v_max3_f32 v{vMc}, v{vMc}, v{R(2,2)}, v{R(3,2)}")
    for k in range(4):
        g(f"v_sub_f32 v{R(k,2)}, v{R(k,2)}, v{vMc}")
    for k in range(4):
        g(f"v_exp_f32 v{R(k,2)}, v{R(k,2)}")
    g("s_nop 0")
    for r in (3, 0, 1):
        for k in range(4):
            g(f"v_mul_f32 v{R(k,r)}, v{R(k,r)}, v{R(k,2)}")
    for r in (3, 0, 1):
        g(f"v_add_f32 v{R(0,r)}, v{R(0,r)}, v{R(1,r)}")
        g(f"v_add_f32 v{R(2,r)}, v{R(2,r)}, v{R(3,r)}")
    g(f"v_add_f32 v{R(0,3)}, v{R(0,3)}, v{R(2,3)}")
    g(f"v_rcp_f32 v{vL}, v{R(0,3)}")
    g(f"v_add_f32 v{R(0,0)}, v{R(0,0)}, v{R(2,0)}")
    g(f"v_add_f32 v{R(0,1)}, v{R(0,1)}, v{R(2,1)}")
    g(f"v_mul_f32 v{R(0,0)}, v{R(0,0)}, v{vL}")
    g(f"v_mul_f32 v{R(0,1)}, v{R(0,1)}, v{vL}")
    g(f"v_cvt_pk_bf16_f32 v{R(0,0)}, v{R(0,0)}, v{R(0,1)}")
    g(f"buffer_store_short v{R(0,0)}, v{vOutA}, s[{sOut}:{sOut+3}], 0 offen")
    g(f"buffer_store_short_d16_hi v{R(0,0)}, v{vOutA}, s[{sOut}:{sOut+3}], 0 offen offset:16")
    g.L.append("; WARM_END")
    g.lab("L_fin")
    if stamps:
        g(f"s_memrealtime s[{sT0+6}:{sT0+7}]")
        g(f"s_getreg_b32 s{sT0+8}, hwreg(HW_REG_XCC_ID)")
        g(f"s_mov_b32 s{sT0+9}, s{sOK}")
        g("s_waitcnt lgkmcnt(0)")
        g(f"s_mul_i32 s{sTmp}, s2, {NW}")
        g(f"s_add_u32 s{sTmp}, s{sTmp}, s{sWave}")
        g(f"s_lshl_b32 s{sTmp}, s{sTmp}, 6")
        g(f"s_add_u32 s{sTmp}, s{sTmp}, {STBASE}")
        g("s_mov_b64 exec, 1")
        for j in range(10):
            g(f"v_mov_b32 v{vKV+j}, s{sT0+j}")
        g(f"v_mov_b32 v{vKV+12}, 0")
        g(f"buffer_store_dwordx4 {vr(vKV,4)}, v{vKV+12}, s[{sW}:{sW+3}], s{sTmp} offen")
        g(f"buffer_store_dwordx4 {vr(vKV+4,4)}, v{vKV+12}, s[{sW}:{sW+3}], s{sTmp} offen offset:16")
        g(f"buffer_store_dwordx2 {vr(vKV+8,2)}, v{vKV+12}, s[{sW}:{sW+3}], s{sTmp} offen offset:32")
    g.lab("L_done")
    g("s_endpgm")
    if not lateclr:
        g.lab("L_helper")
        g.c("helper wave: mark this workgroup's partial slot as empty, then count this workgroup (and its XCC) in")
        g("s_load_dwordx4 s[12:15], s[0:1], 32")
        g(f"s_getreg_b32 s{sExp}, hwreg(HW_REG_XCC_ID, 0, 4)")
        g(f"v_and_b32 v{vVoff}, 63, v0")
        g(f"v_lshlrev_b32 v{vVoff}, 4, v{vVoff}")
        for r in range(4):
            g(f"v_mov_b32 v{vS+r}, -1")
        g(f"s_cmp_gt_u32 s{sExp}, 7")
        g("s_cbranch_scc1 L_done")
        g(f"s_mul_i32 s{sExp}, s{sExp}, 3")
        g(f"s_lshl_b32 s{sExp}, 1, s{sExp}")
        g(f"s_lshl_b32 s{sTmp}, s{sGrp}, 2")
        g(f"s_lshl_b32 s{sSl}, s2, 12")
        g(f"s_mov_b32 s{sW+2}, {STBASE}")
        g(f"s_mov_b32 s{sW+3}, 0x20000")
        g("s_waitcnt lgkmcnt(0)")
        g(f"s_mov_b32 s{sW}, s14")
        g(f"s_mov_b32 s{sW+1}, s15")
        for wv in range(2):
            g(f"buffer_store_dwordx4 {vr(vS,4)}, v{vVoff}, s[{sW}:{sW+3}], s{sSl} offen offset:{wv*1024}")
        g("s_mov_b64 exec, 0xff")
        g(f"buffer_store_dwordx4 {vr(vS,4)}, v{vVoff}, s[{sW}:{sW+3}], s{sSl} offen offset:2048")
        g(f"s_add_u32 s{sDp}, s12, s{sTmp}")
        g(f"s_addc_u32 s{sDp+1}, s13, 0")
        g("s_waitcnt vmcnt(0)")
        g(f"s_atomic_add s{sExp}, s[{sDp}:{sDp+1}], 0x0")
        if warm:
            g.c("then walk the tail code (one branch per cache line, no lane active) so it is in the instruction cache")
            g("s_waitcnt lgkmcnt(0)")
            g("s_mov_b64 exec, -1")
            g(f"s_lshl_b32 s{sTmp}, s{sGrp}, 21")
            g(f"s_add_u32 s{sK}, s6, s{sTmp}")
            g(f"s_addc_u32 s{sK+1}, s7, 0")
            g(f"s_add_u32 s{sV}, s8, s{sTmp}")
            g(f"s_addc_u32 s{sV+1}, s9, 0")
            tail_setup(True)
            g("s_mov_b64 exec, 0")
            g("s_branch L_hop0")
        else:
            g("s_endpgm")

    g.lab("L_codeend")
    g.L.append('.section .rodata,"a"')
    g.L.append(".p2align 6")
    g.L.append(f".amdhsa_kernel {NAME}_kernel")
    g.L.append(f"  .amdhsa_next_free_vgpr {nv}")
    g.L.append(f"  .amdhsa_next_free_sgpr 92")
    g.L.append(f"  .amdhsa_accum_offset {(nv+3)//4*4}")
    g.L.append("  .amdhsa_group_segment_fixed_size 0")
    g.L.append("  .amdhsa_kernarg_size 48")
    g.L.append("  .amdhsa_user_sgpr_count 2")
    g.L.append("  .amdhsa_user_sgpr_kernarg_segment_ptr 1")
    g.L.append("  .amdhsa_system_sgpr_workgroup_id_x 1")
    g.L.append(".end_amdhsa_kernel")
    if warm:
        return add_hops(g.L, warm)
    return g.text()

def add_hops(L, spacing):
    import subprocess, re
    L = "\n".join(L).split("\n")
    def is_insn(l):
        t = l.strip()
        return bool(t) and not t.startswith(";") and not t.startswith(".") and not t.endswith(":")
    tmp = [l if "L_hop0" not in l else "    s_branch L_done" for l in L]
    open("hop.s", "w").write("\n".join(tmp) + "\n")
    subprocess.run(["clang", "-x", "assembler", "-target", "amdgcn-amd-amdhsa", "-mcpu=gfx950", "-c", "hop.s", "-o", "hop.o"], check=True)
    d = subprocess.run(["llvm-objdump", "-d", "--mcpu=gfx950", "hop.o"], capture_output=True, text=True).stdout
    sizes = [4 * len(m.group(1).split()) for m in re.finditer(r"// [0-9A-F]{12}: ([0-9A-F ]+)$", d, re.M)]
    out = []; k = 0; inside = False; since = None; nh = 0
    txt_end = [i for i, l in enumerate(L) if l.startswith(".section")][0]
    for i, l in enumerate(L):
        if l.startswith("; WARM_BEGIN"):
            inside = True; since = 1 << 30; continue
        if l.startswith("; WARM_END"):
            inside = False
            out.append(f"L_hop{nh}:"); out.append("    s_cbranch_execz L_done"); continue
        if i < txt_end and is_insn(l):
            sz = sizes[k]; k += 1
            if inside:
                if since + sz > spacing:
                    out.append(f"L_hop{nh}:"); out.append(f"    s_cbranch_execz L_hop{nh+1}"); nh += 1; since = 4
                since += sz
        out.append(l)
    assert k == len(sizes), (k, len(sizes))
    return "\n".join(out) + "\n"

if __name__ == "__main__":
    ap = argparse.ArgumentParser()
    ap.add_argument("-o", default="cdna_kernels/" + NAME + ".s")
    ap.add_argument("--a", type=int, default=5)
    ap.add_argument("--waits", default="4")
    ap.add_argument("--ld", default="nt")
    ap.add_argument("--stamps", action="store_true")
    ap.add_argument("--forcefb", action="store_true")
    ap.add_argument("--chkit", type=int, default=8)
    ap.add_argument("--tog", type=lambda x: int(x, 0), default=0xc000)
    ap.add_argument("--cpf", action="store_true")
    ap.add_argument("--warm", type=int, default=0)
    ap.add_argument("--flat", action="store_true")
    ap.add_argument("--noimm", action="store_true")
    ap.add_argument("--tau", type=int, default=0)
    ap.add_argument("--t00", type=int, default=70)
    ap.add_argument("--wlo", default="4")
    ap.add_argument("--whi", default="5")
    ap.add_argument("--org1", action="store_true")
    ap.add_argument("--selfcal", action="store_true")
    ap.add_argument("--dtau", type=int, default=0)
    ap.add_argument("--dl", type=int, default=0)
    ap.add_argument("--anchors", default="1,5,9")
    ap.add_argument("--fcap", type=int, default=14)
    ap.add_argument("--fixtau", action="store_true")
    ap.add_argument("--emode", type=int, default=0)
    ap.add_argument("--warmx", action="store_true")
    ap.add_argument("--lateclr", type=int, default=0)
    a = ap.parse_args()
    w = [int(x) for x in a.waits.split(",")]
    open(a.o, "w").write(gen(a.a, w, a.ld.replace("_", " ").replace("none", ""), a.stamps, a.forcefb, a.chkit, a.tog, a.cpf, a.warm, a.flat, a.noimm, a.tau, a.t00, [int(x) for x in a.wlo.split(",")], [int(x) for x in a.whi.split(",")], a.org1, a.selfcal, a.dtau, a.dl, tuple(int(x) for x in a.anchors.split(",")), a.fcap, a.fixtau, a.emode, a.warmx, a.lateclr))
```
